```python
import torch

def _softmax(x, axis=-1):
    return torch.softmax(x, dim=axis)

def _gelu(x):
    return torch.nn.functional.gelu(x, approximate='tanh')

def _silu(x):
    return torch.nn.functional.silu(x)

def _sigmoid(x):
    return torch.sigmoid(x)

def _layernorm(x, axis=-1, eps=1e-05):
    m = x.mean(dim=axis, keepdim=True)
    v = x.var(dim=axis, keepdim=True, unbiased=False)
    return (x - m) / torch.sqrt(v + eps)

def _scatter_add(tgt, idx, src, axis=0):
    return tgt.clone().index_add_(axis, idx, src)

def _segment_sum(src, seg, n):
    out = torch.zeros((n,) + src.shape[1:], dtype=src.dtype)
    return out.index_add_(0, seg, src)

def _pad(x, pw):
    flat = tuple((v for pair in reversed(pw) for v in pair))
    return torch.nn.functional.pad(x, flat)
kernel_name = 'adaLN_cond__mha_block__geglu_ffn__prompt'

def setup_inputs():

    _w = lambda a: (lambda t: t.to(torch.bfloat16) if t.is_floating_point() else t)(torch.as_tensor(a))

    def _A_setup():
        B, S, D, H = (1, 2048, 640, 32)
        return {'x': _w((lambda *s: torch.randn(*s, dtype=torch.bfloat16) * 0.05)(B, S, D)), 'wqkv': _w((lambda *s: torch.randn(*s, dtype=torch.bfloat16) * 0.05)(D, 3 * D)), 'wo': _w((lambda *s: torch.randn(*s, dtype=torch.bfloat16) * 0.05)(D, D))}
    _A_in = _A_setup()

    def _B_setup():
        B, S, D, F = (1, 2048, 640, 1728)
        return {'x': _w((lambda *s: torch.randn(*s, dtype=torch.bfloat16) * 0.05)(B, S, D)), 'w_gate': _w((lambda *s: torch.randn(*s, dtype=torch.bfloat16) * 0.05)(D, F)), 'w_up': _w((lambda *s: torch.randn(*s, dtype=torch.bfloat16) * 0.05)(D, F)), 'w_down': _w((lambda *s: torch.randn(*s, dtype=torch.bfloat16) * 0.05)(F, D))}
    _B_in = _B_setup()
    return {'A_x': _A_in['x'], 'A_wqkv': _A_in['wqkv'], 'A_wo': _A_in['wo'], 'B_x': _B_in['x'], 'B_w_gate': _B_in['w_gate'], 'B_w_up': _B_in['w_up'], 'B_w_down': _B_in['w_down'], 'c': _w((lambda *s: torch.randn(*s, dtype=torch.bfloat16) * 0.1)(1, 640) * 8.0), 'w_mod': _w((lambda *s: torch.randn(*s, dtype=torch.bfloat16) * 0.1)(640, 6 * 640) * 640 ** (-0.5) * 8.0)}

def reference(A_x, A_wqkv, A_wo, B_x, B_w_gate, B_w_up, B_w_down, c, w_mod):

    def _A_ref(x, wqkv, wo):
        B, S, D = x.shape
        H = 32
        Dh = D // H
        qkv = (lambda x, *d: x.permute(*d))((x @ wqkv).reshape(B, S, 3, H, Dh), 2, 0, 3, 1, 4)
        q, k, v = (qkv[0], qkv[1], qkv[2])
        scores = torch.einsum('bhqd,bhkd->bhqk', q, k) * Dh ** (-0.5)
        p = _softmax(scores, axis=-1)
        o = torch.einsum('bhqk,bhkd->bhqd', p, v)
        return (lambda x, *d: x.permute(*d))(o, 0, 2, 1, 3).reshape(B, S, D) @ wo

    def _B_ref(x, w_gate, w_up, w_down):
        return _gelu(x @ w_gate) * (x @ w_up) @ w_down
    x = A_x
    mod = (_silu(c) @ w_mod).reshape(c.shape[0], 6, 1, -1)
    sa, ca, ga, sb, cb, gb = (mod[:, 0].clone(), mod[:, 1].clone(), mod[:, 2].clone(), mod[:, 3].clone(), mod[:, 4].clone(), mod[:, 5].clone())
    h = _layernorm(x, axis=-1) * (1 + ca) + sa
    x = x + ga * _A_ref(h, A_wqkv, A_wo)
    h = _layernorm(x, axis=-1) * (1 + cb) + sb
    x = x + gb * _B_ref(h, B_w_gate, B_w_up, B_w_down)
    return x
```

```python
import re

TRANS = ("v_exp_f32", "v_log_f32", "v_rcp_f32", "v_rsq_f32", "v_sqrt_f32", "v_sin_f32", "v_cos_f32",
         "v_exp_f16", "v_rcp_f16", "v_rcp_iflag_f32")


def parse_reg(tok):
    tok = tok.strip()
    neg = tok.lstrip("-").strip()
    m = re.fullmatch(r"(?:abs\()?\|?([vas])(\d+)\|?\)?", neg)
    if m:
        return [(m.group(1), int(m.group(2)))]
    m = re.fullmatch(r"([vas])\[(\d+):(\d+)\]", neg)
    if m:
        return [(m.group(1), i) for i in range(int(m.group(2)), int(m.group(3)) + 1)]
    if neg in ("vcc", "vcc_lo", "vcc_hi"):
        return [("x", "vcc")]
    if neg in ("exec", "exec_lo", "exec_hi"):
        return [("x", "exec")]
    if neg == "m0":
        return [("x", "m0")]
    return []


class Ins:
    __slots__ = ("text", "mn", "ops", "w", "r", "kind", "passes", "A", "B", "C", "nop", "lds_dma", "wide_store", "dpp",
                 "sdwa")

    def __init__(self, text):
        self.text = text
        t = text.split(";")[0].strip()
        parts = t.split(None, 1)
        self.mn = parts[0]
        rest = parts[1] if len(parts) > 1 else ""
        ops, cur, depth = [], "", 0
        for ch in rest:
            if ch in "[(":
                depth += 1
            if ch in "])":
                depth -= 1
            if ch == "," and depth == 0:
                ops.append(cur.strip())
                cur = ""
            else:
                cur += ch
        if cur.strip():
            ops.append(cur.strip())
        mods = ""
        if ops:
            sp = ops[-1].split(None, 1)
            if len(sp) > 1 and not ops[-1].startswith("hwreg"):
                ops[-1] = sp[0]
                mods = sp[1]
        self.ops = ops
        self.w, self.r = [], []
        self.A = self.B = self.C = []
        self.passes = 0
        self.nop = 1
        self.lds_dma = False
        self.wide_store = False
        self.dpp = ("_dpp" in self.mn) or ("row_" in mods) or ("quad_perm" in mods)
        self.sdwa = "_sdwa" in self.mn
        mn = self.mn
        R = [parse_reg(o) for o in ops]
        if mn == "s_nop":
            self.kind = "nop"
            self.nop = int(ops[0], 0) + 1
        elif mn.startswith("v_mfma") or mn.startswith("v_smfmac"):
            self.kind = "mfma"
            self.passes = 4 if ("16x16x32" in mn or "16x16x16" in mn or "16x16x64" in mn) else 8
            if "32x32x4" in mn:
                self.passes = 16
            self.w = R[0]
            self.A, self.B = R[1], R[2]
            if mn.startswith("v_smfmac"):
                self.C = R[0]
                self.B = R[2] + R[3]
            else:
                self.C = R[3]
            self.r = self.A + self.B + self.C
        elif mn.startswith("v_"):
            self.kind = "trans" if any(mn.startswith(x) for x in TRANS) else "valu"
            base = mn
            if base.startswith("v_permlane") and "swap" in base:
                self.w = R[0] + R[1]
                self.r = R[0] + R[1]
            elif base.startswith("v_cmp"):
                self.w = R[0]
                self.r = sum(R[1:], [])
            elif base.startswith(("v_add_co", "v_sub_co", "v_addc_co", "v_subb_co")):
                self.w = R[0] + R[1]
                self.r = sum(R[2:], [])
            else:
                self.w = R[0]
                self.r = sum(R[1:], [])
                if base.startswith(("v_fmac", "v_dot2c", "v_mac", "v_pk_fmac")) or "UNUSED_PRESERVE" in mods or self.dpp:
                    self.r = self.r + R[0]
                if base.startswith("v_cndmask") and len(ops) == 3:
                    self.r = self.r + [("x", "vcc")]
        elif mn.startswith("ds_"):
            self.kind = "ds"
            if mn.startswith(("ds_read", "ds_bpermute", "ds_swizzle", "ds_permute")):
                self.w = R[0]
                self.r = sum(R[1:], [])
            else:
                self.r = sum(R, [])
        elif mn.startswith(("buffer_", "global_")):
            self.kind = "vmem"
            allmods = mods + " " + " ".join(ops)
            if mn in ("buffer_wbl2", "buffer_inv"):
                pass
            elif re.search(r"\blds\b", mods) or "load_lds" in mn:
                self.lds_dma = True
                self.r = sum(R, []) + [("x", "m0")]
            elif "load" in mn:
                self.w = R[0]
                self.r = sum(R[1:], [])
            elif "atomic" in mn:
                self.r = sum(R, [])
                if re.search(r"\bsc0\b", allmods):
                    self.w = R[0]
            else:
                self.r = sum(R, [])
                if "x4" in mn or "x3" in mn:
                    self.wide_store = True
        elif mn.startswith("s_load") or mn.startswith("s_buffer_load") or mn in ("s_memtime", "s_memrealtime"):
            self.kind = "smem"
            self.w = R[0]
            self.r = sum(R[1:], [])
        elif mn == "s_waitcnt":
            self.kind = "wait"
        elif mn.startswith("s_"):
            self.kind = "salu"
            if mn.startswith(("s_cmp", "s_cbranch", "s_branch", "s_barrier", "s_endpgm", "s_setprio", "s_sleep",
                              "s_bitcmp")):
                self.r = sum(R, [])
            elif "saveexec" in mn:
                self.w = R[0] + [("x", "exec")]
                self.r = sum(R[1:], []) + [("x", "exec")]
            else:
                self.w = R[0] if R else []
                self.r = sum(R[1:], [])
                if mn.startswith(("s_addk", "s_mulk")):
                    self.r = self.r + R[0]
        else:
            raise ValueError("unknown instruction: " + text)


MFMA_D_RAW = {2: 5, 4: 8, 8: 12, 16: 20}
MFMA_D_C_OVERLAP = {2: 4, 4: 6, 8: 10, 16: 18}
MFMA_C_WAR = {2: 1, 4: 3, 8: 7, 16: 15}


def check_stream(name, stream):
    probs = []
    n = len(stream)
    pos = [0] * (n + 1)
    for i, ins in enumerate(stream):
        pos[i + 1] = pos[i] + ins.nop
    last_w = {}
    last_mfma_c = {}
    last_store = {}
    vm_out = []
    lg_out = []

    def dist(a, b):
        return pos[b] - pos[a + 1]

    def need(a, b, k, why):
        if dist(a, b) < k:
            probs.append(f"[{name}] {why}: need {k} have {dist(a, b)}\n    P: {stream[a].text.strip()}\n    C: {stream[b].text.strip()}")

    for i, ins in enumerate(stream):
        if ins.kind == "wait":
            m = re.search(r"vmcnt\((\d+)\)", ins.text)
            if m:
                k = int(m.group(1))
                while len(vm_out) > k:
                    vm_out.pop(0)
            m = re.search(r"lgkmcnt\((\d+)\)", ins.text)
            if m:
                k = int(m.group(1))
                if k == 0:
                    lg_out = []
                else:
                    if any(x[2] for x in lg_out):
                        probs.append(f"[{name}] counted lgkmcnt with SMEM outstanding: {ins.text.strip()}")
                    while len(lg_out) > k:
                        lg_out.pop(0)
            continue
        touched = set(ins.r) | set(ins.w)
        for (j, regs) in vm_out:
            if touched & regs:
                probs.append(f"[{name}] register pending from vmem load\n    P: {stream[j].text.strip()}\n    C: {ins.text.strip()}")
                break
        for (j, regs, _) in lg_out:
            if touched & regs:
                probs.append(f"[{name}] register pending from lgkm op\n    P: {stream[j].text.strip()}\n    C: {ins.text.strip()}")
                break
        isvalu = ins.kind in ("valu", "trans")
        for reg in set(ins.r):
            j = last_w.get(reg)
            if j is None:
                continue
            p = stream[j]
            pv = p.kind in ("valu", "trans")
            if pv and reg[0] in "va":
                if ins.kind == "mfma":
                    need(j, i, 2, "VALU->MFMA operand")
                if isvalu and ins.mn.startswith("v_permlane"):
                    need(j, i, 2, "VALU->permlane")
                if isvalu and ins.dpp and reg in parse_reg(ins.ops[1]):
                    need(j, i, 2, "VALU->DPP")
                if isvalu and ins.mn.startswith(("v_readlane", "v_readfirstlane")):
                    need(j, i, 1, "VALU->readlane")
                if p.mn.startswith("v_dot") and not ins.mn.startswith(p.mn[:8]):
                    need(j, i, 3, "DLop->other")
                if p.kind == "trans" and ins.kind == "valu":
                    need(j, i, 1, "trans->VALU")
                if p.sdwa and isvalu and "dst_sel:DWORD" not in p.text:
                    need(j, i, 1, "SDWA dst_sel->VALU")
            if pv and (reg[0] == "s" or reg == ("x", "vcc")):
                if isvalu:
                    need(j, i, 2, "VALU sgpr write->VALU read")
                if ins.kind == "vmem":
                    need(j, i, 5, "VALU sgpr write->VMEM")
            if p.kind == "salu" and reg == ("x", "m0") and ins.lds_dma:
                need(j, i, 1, "m0 write->LDS DMA")
            if p.kind == "mfma":
                if ins.kind == "mfma":
                    if reg in ins.A or reg in ins.B:
                        need(j, i, MFMA_D_RAW[p.passes], "MFMA D->MFMA A/B")
                    elif reg in ins.C:
                        if not (ins.C == p.w and ins.passes == p.passes):
                            need(j, i, MFMA_D_C_OVERLAP[p.passes], "MFMA D->MFMA C overlap")
                else:
                    need(j, i, MFMA_D_RAW[p.passes], "MFMA D->read")
        for reg in set(ins.w):
            j = last_w.get(reg)
            if j is not None and stream[j].kind == "mfma" and ins.kind != "mfma":
                need(j, i, MFMA_D_RAW[stream[j].passes], "MFMA D->write (WAW)")
            j = last_mfma_c.get(reg)
            if j is not None and isvalu:
                need(j, i, MFMA_C_WAR[stream[j].passes], "MFMA C read->VALU write (WAR)")
            j = last_store.get(reg)
            if j is not None:
                need(j, i, 2 if isvalu else 1, "wide store data WAR")
        for reg in ins.w:
            last_w[reg] = i
        if ins.kind == "mfma":
            for reg in ins.C:
                last_mfma_c[reg] = i
        if ins.wide_store:
            for reg in parse_reg(ins.ops[0]):
                last_store[reg] = i
        if ins.kind == "vmem":
            vm_out.append((i, set(ins.w)))
            if len(vm_out) > 63:
                probs.append(f"[{name}] more than 63 vmem outstanding at {ins.text.strip()}")
                vm_out.pop(0)
        if ins.kind == "ds":
            lg_out.append((i, set(ins.w), False))
        if ins.kind == "smem":
            lg_out.append((i, set(ins.w), True))
    return probs


INSTRUMENT = False
STAMP_OFF = 0x8000000
_kidx = [0]


class Kernel:
    def __init__(self, name, grid, block, lds):
        self.kidx = _kidx[0]
        _kidx[0] += 1
        self.name, self.grid, self.block, self.lds = name, grid, block, lds
        self.items = []
        self.vnext = 1
        self.snext = 4
        self.vmax = 1
        self.smax = 4
        self.uses_agpr = 0
        self._lbl = 0

    def v(self, n=1, align=None):
        if align is None:
            align = 1 if n == 1 else 2
        b = (self.vnext + align - 1) // align * align
        self.vnext = b + n
        self.vmax = max(self.vmax, self.vnext)
        assert self.vnext <= 512, "out of vgprs"
        return b

    def s(self, n=1, align=None):
        if align is None:
            align = 1 if n == 1 else (2 if n == 2 else 4)
        b = (self.snext + align - 1) // align * align
        self.snext = b + n
        self.smax = max(self.smax, self.snext)
        assert self.snext <= (68 if INSTRUMENT else 100), "out of sgprs"
        return b

    def label(self, base="L"):
        self._lbl += 1
        return f"{self.name}_{base}{self._lbl}"

    def __call__(self, text):
        for line in text.split("\n"):
            t = line.strip()
            if not t:
                continue
            if t.startswith(";"):
                self.items.append(("raw", "  " + t))
            elif t.endswith(":"):
                self.items.append(("l", t))
            elif t.startswith("."):
                self.items.append(("raw", t))
            else:
                self.items.append(("i", t))

    def stamp(self, i):
        if INSTRUMENT:
            self.items.append(("i", f"s_memtime s[{68 + 2 * i}:{69 + 2 * i}]"))
            self.nstamp = max(getattr(self, "nstamp", 0), i + 1)

    def loop_begin(self):
        self.items.append(("loop_begin",))

    def loop_end(self):
        self.items.append(("loop_end",))

    def cut(self):
        self.items.append(("cut",))

    def _vr(self, text):
        return text

    def trace(self):
        traces = [[]]
        stack = []
        for it in self.items:
            if it[0] == "i":
                traces[-1].append(it[1])
            elif it[0] == "loop_begin":
                stack.append(len(traces[-1]))
            elif it[0] == "loop_end":
                b = stack.pop()
                traces[-1].extend(traces[-1][b:])
            elif it[0] == "cut":
                traces.append([])
        return traces

    def check(self):
        probs = []
        for t in self.trace():
            probs += check_stream(self.name, [Ins(x) for x in t])
        return probs

    def text(self):
        out = [f".globl {self.name}", ".p2align 8", f".type {self.name},@function", f"{self.name}:"]
        if INSTRUMENT:
            out.append("  s_memrealtime s[96:97]")
            out.append("  s_memtime s[98:99]")
            for i in range(12):
                out.append(f"  s_mov_b32 s{68 + 2 * i}, 0")
        for it in self.items:
            if it[0] == "i" and it[1] == "s_endpgm" and INSTRUMENT:
                out.append(f"""  s_waitcnt vmcnt(0) lgkmcnt(0)
  s_memrealtime s[94:95]
  s_memtime s[92:93]
  s_load_dwordx2 s[64:65], s[0:1], 88
  s_mov_b64 exec, -1
  s_mov_b32 s66, 0x10000000
  s_mov_b32 s67, 0x20000
  v_lshrrev_b32 v1, 6, v0
  v_lshlrev_b32 v1, 6, v1
  s_lshl_b32 s63, s2, 10
  s_add_u32 s63, s63, {STAMP_OFF + self.kidx * 0x100000}
  s_waitcnt lgkmcnt(0)
  v_mov_b32 v4, s96
  v_mov_b32 v5, s94
  v_mov_b32 v6, s98
  v_mov_b32 v7, s92
  buffer_store_dwordx4 v[4:7], v1, s[64:67], s63 offen""")
                for q in range(3):
                    out.append("  s_nop 1")
                    for e in range(4):
                        out.append(f"  v_mov_b32 v{8 + 4 * q + e}, s{68 + 2 * (4 * q + e)}")
                    out.append(f"  buffer_store_dwordx4 v[{8 + 4 * q}:{11 + 4 * q}], v1, s[64:67], s63 offen offset:{16 + 16 * q}")
                out.append("  s_endpgm")
            elif it[0] == "i":
                out.append("  " + it[1])
            elif it[0] == "l":
                out.append(it[1])
            elif it[0] == "raw":
                out.append(it[1])
        return "\n".join(out) + "\n"

    def regs_used(self):
        mv, ma, ms = 0, -1, 0
        for it in self.items:
            if it[0] != "i":
                continue
            t = it[1].split(";")[0]
            for m in re.finditer(r"\b([vas])(\d+)\b|\b([vas])\[(\d+):(\d+)\]", t):
                c = m.group(1) or m.group(3)
                hi = int(m.group(2)) if m.group(2) else int(m.group(5))
                if c == "v":
                    mv = max(mv, hi)
                elif c == "a":
                    ma = max(ma, hi)
                else:
                    ms = max(ms, hi)
        return mv + 1, ma + 1, ms + 1

    def descriptor(self):
        nv, na, ns = self.regs_used()
        if INSTRUMENT:
            nv, ns = max(nv, 20), 100
        acc = (nv + 3) // 4 * 4
        tot = acc + na if na else nv
        return f""".p2align 6
.amdhsa_kernel {self.name}
  .amdhsa_next_free_vgpr {tot}
  .amdhsa_next_free_sgpr {max(ns, 16)}
  .amdhsa_accum_offset {acc}
  .amdhsa_group_segment_fixed_size 0
  .amdhsa_kernarg_size 96
  .amdhsa_user_sgpr_count 2
  .amdhsa_user_sgpr_kernarg_segment_ptr 1
  .amdhsa_system_sgpr_workgroup_id_x 1
.end_amdhsa_kernel
"""

    def launch_line(self):
        return f"; @launch kernel={self.name} grid=({self.grid},1,1) block=({self.block},1,1) lds={self.lds}"


def vr(b, n):
    if b >= 256:
        b -= 256
        return f"a{b}" if n == 1 else f"a[{b}:{b + n - 1}]"
    assert b + n <= 256, (b, n)
    return f"v{b}" if n == 1 else f"v[{b}:{b + n - 1}]"


def sr(b, n):
    return f"s{b}" if n == 1 else f"s[{b}:{b + n - 1}]"


def build_file(kernels, header):
    s = header
    for k in kernels:
        s += k.launch_line() + "\n"
    s += '.amdgcn_target "amdgcn-amd-amdhsa--gfx950"\n.text\n'
    seen = []
    for k in kernels:
        if k.name in seen:
            continue
        seen.append(k.name)
        s += k.text()
    s += 'code_end:\n.section .rodata,"a"\n'
    seen = []
    for k in kernels:
        if k.name in seen:
            continue
        seen.append(k.name)
        s += k.descriptor()
    return s
```

```python
from asmlib import *
import layout as L

def srd(k, dst, ptr, size):
    k(f"s_mov_b32 s{dst}, s{ptr}")
    k(f"s_mov_b32 s{dst+1}, s{ptr+1}")
    k(f"s_mov_b32 s{dst+2}, {size}")
    k(f"s_mov_b32 s{dst+3}, 0x20000")

def load_srd(k, argoff, size):
    d = k.s(4, 4)
    k(f"s_load_dwordx2 s[{d}:{d+1}], s[0:1], {argoff}")
    k(f"s_mov_b32 s{d+2}, {size}")
    k(f"s_mov_b32 s{d+3}, 0x20000")
    return d

def wave_id(k):
    sw = k.s()
    t = k.v()
    k(f"v_lshrrev_b32 v{t}, 6, v0")
    lane = k.v()
    k(f"v_and_b32 v{lane}, 63, v0")
    k(f"v_readfirstlane_b32 s{sw}, v{t}")
    return sw, lane

def repack_loads(k, dst8, voff, src_srd, soffs):
    for j in range(8):
        so = soffs[j]
        k(f"buffer_load_dword v{dst8+j}, v{voff}, s[{src_srd}:{src_srd+3}], {so} offen")

def repack_store(k, src8, tmp8, sel_lo, sel_hi, voff_out, ws_srd, soff_out):
    for d in range(4):
        k(f"v_perm_b32 v{tmp8+d}, v{src8+2*d+1}, v{src8+2*d}, s{sel_lo}")
    for d in range(4):
        k(f"v_perm_b32 v{tmp8+4+d}, v{src8+2*d+1}, v{src8+2*d}, s{sel_hi}")
    k(f"buffer_store_dwordx4 v[{tmp8}:{tmp8+3}], v{voff_out}, s[{ws_srd}:{ws_srd+3}], {soff_out} offen")
    k(f"buffer_store_dwordx4 v[{tmp8+4}:{tmp8+7}], v{voff_out}, s[{ws_srd}:{ws_srd+3}], {soff_out} offen offset:16")
```

```python
from common import *
LOG2E = 0x3fb8aa3b

def gen_k1a():
    k = Kernel("k1a_kernel", 390, 256, 4096)
    Lrep, Lend = k.label("rep"), k.label("end")
    k(f"s_cmp_ge_u32 s2, 390")
    k(f"s_cbranch_scc1 {Lend}")
    ws = load_srd(k, L.A_WS, L.WS_USED)
    k(f"s_cmp_ge_u32 s2, 240")
    k(f"s_cbranch_scc1 {Lrep}")
    wm = load_srd(k, L.A_WMOD, 640*3840*2)
    cs = load_srd(k, L.A_C, 1280)
    sw, lane = wave_id(k)
    skq, sstrip, st = k.s(), k.s(), k.s()
    k(f"s_mul_i32 s{skq}, s2, 1093")
    k(f"s_lshr_b32 s{skq}, s{skq}, 16")
    k(f"s_mul_i32 s{st}, s{skq}, 60")
    k(f"s_sub_u32 s{sstrip}, s2, s{st}")
    row, vw, vc, t = k.v(), k.v(), k.v(), k.v()
    k(f"s_mul_i32 s{st}, s{skq}, 160")
    k(f"v_lshrrev_b32 v{row}, 3, v0")
    k(f"v_add_u32 v{row}, s{st}, v{row}")
    k(f"v_lshlrev_b32 v{vc}, 1, v{row}")
    k(f"v_mul_u32_u24 v{vw}, 7680, v{row}")
    k(f"v_and_b32 v{t}, 7, v0")
    k(f"v_lshl_add_u32 v{vw}, v{t}, 4, v{vw}")
    k(f"s_lshl_b32 s{st}, s{sstrip}, 7")
    k(f"v_add_u32 v{vw}, s{st}, v{vw}")
    so = [k.s() for _ in range(5)]
    for i in range(5):
        k(f"s_mov_b32 s{so[i]}, {i*32*7680}")
    W = k.v(20, 4); C = k.v(5); acc = k.v(8, 4); u = k.v(8)
    k("s_waitcnt lgkmcnt(0)")
    for i in range(5):
        k(f"buffer_load_ushort v{C+i}, v{vc}, s[{cs}:{cs+3}], 0 offen offset:{64*i}")
    for i in range(5):
        k(f"buffer_load_dwordx4 v[{W+4*i}:{W+4*i+3}], v{vw}, s[{wm}:{wm+3}], s{so[i]} offen")
    for j in range(8):
        k(f"v_mov_b32 v{acc+j}, 0")
    k("s_waitcnt vmcnt(5)")
    for i in range(5):
        k(f"v_lshlrev_b32 v{C+i}, 16, v{C+i}")
    for i in range(5):
        k(f"v_mul_f32 v{u+i}, {LOG2E ^ 0x80000000:#x}, v{C+i}")
    for i in range(5):
        k(f"v_exp_f32 v{u+i}, v{u+i}")
    for i in range(5):
        k(f"v_add_f32 v{u+i}, 1.0, v{u+i}")
    for i in range(5):
        k(f"v_rcp_f32 v{u+i}, v{u+i}")
    for i in range(5):
        k(f"v_mul_f32 v{C+i}, v{C+i}, v{u+i}")
    for i in range(5):
        k(f"v_cvt_pk_bf16_f32 v{C+i}, v{C+i}, v{C+i}")
    for i in range(5):
        k(f"v_lshlrev_b32 v{C+i}, 16, v{C+i}")
    for i in range(5):
        k(f"s_waitcnt vmcnt({4-i})")
        for d in range(4):
            k(f"v_lshlrev_b32 v{u+2*d}, 16, v{W+4*i+d}")
            k(f"v_and_b32 v{u+2*d+1}, 0xffff0000, v{W+4*i+d}")
        for j in range(8):
            k(f"v_fmac_f32 v{acc+j}, v{C+i}, v{u+j}")
    k("s_nop 1")
    for j in range(8):
        k(f"v_add_f32_dpp v{acc+j}, v{acc+j}, v{acc+j} row_ror:8 row_mask:0xf bank_mask:0xf")
    k(f"v_lshrrev_b32 v{row}, 4, v0")
    k(f"v_lshlrev_b32 v{row}, 8, v{row}")
    k(f"v_lshl_add_u32 v{row}, v{t}, 5, v{row}")
    k(f"ds_write_b128 v{row}, v[{acc}:{acc+3}]")
    k(f"ds_write_b128 v{row}, v[{acc+4}:{acc+7}] offset:16")
    k("s_waitcnt lgkmcnt(0)")
    k("s_barrier")
    k(f"s_cmp_lg_u32 s{sw}, 0")
    k(f"s_cbranch_scc1 {Lend}")
    k(f"v_lshlrev_b32 v{row}, 2, v{lane}")
    for p in range(16):
        k(f"ds_read_b32 v{W+p}, v{row} offset:{256*p}")
    k("s_waitcnt lgkmcnt(0)")
    for step in (8, 4, 2, 1):
        for p in range(step):
            k(f"v_add_f32 v{W+p}, v{W+p}, v{W+p+step}")
    k(f"s_mul_i32 s{st}, s{skq}, {3840*4}")
    k(f"s_lshl_b32 s{sstrip}, s{sstrip}, 8")
    k(f"s_add_u32 s{st}, s{st}, s{sstrip}")
    k(f"s_add_u32 s{st}, s{st}, {L.MODP}")
    k(f"buffer_store_dword v{W}, v{row}, s[{ws}:{ws+3}], s{st} offen")
    k("s_endpgm")
    k.cut()
    k(f"{Lrep}:")
    k.vnext = 1; k.snext = wm
    wq = load_srd(k, L.A_WQKV, 640*1920*2)
    sw, lane = wave_id(k)
    sW, sTT, sS, st = k.s(), k.s(), k.s(), k.s()
    k(f"s_sub_u32 s{sW}, s2, 240")
    k(f"s_lshl_b32 s{sW}, s{sW}, 2")
    k(f"s_add_u32 s{sW}, s{sW}, s{sw}")
    k(f"s_mul_i32 s{sS}, s{sW}, 2185")
    k(f"s_lshr_b32 s{sS}, s{sS}, 16")
    k(f"s_mul_i32 s{st}, s{sS}, 30")
    k(f"s_sub_u32 s{sTT}, s{sW}, s{st}")
    k(f"s_lshl_b32 s{sTT}, s{sTT}, 1")
    k(f"s_lshl_b32 s{sS}, s{sS}, 1")
    T, G, tt, i_, h, col, c2, vin, vout = [k.v() for _ in range(9)]
    k(f"v_lshrrev_b32 v{T}, 5, v{lane}")
    k(f"v_add_u32 v{T}, s{sTT}, v{T}")
    k(f"v_and_b32 v{i_}, 15, v{lane}")
    k(f"v_lshlrev_b32 v{i_}, 1, v{i_}")
    k(f"v_bfe_u32 v{h}, v{lane}, 4, 1")
    k(f"v_mul_u32_u24 v{G}, 205, v{T}")
    k(f"v_lshrrev_b32 v{G}, 10, v{G}")
    k(f"v_mul_u32_u24 v{tt}, 5, v{G}")
    k(f"v_sub_u32 v{tt}, v{T}, v{tt}")
    k(f"v_mul_u32_u24 v{G}, 160, v{G}")
    k(f"v_mul_u32_u24 v{col}, 40, v{tt}")
    k(f"v_add_u32 v{col}, v{col}, v{G}")
    k(f"v_lshrrev_b32 v{c2}, 4, v{i_}")
    k(f"v_lshl_add_u32 v{col}, v{c2}, 2, v{col}")
    k(f"v_add_u32 v{col}, v{col}, v{i_}")
    k(f"v_lshrrev_b32 v{c2}, 2, v{i_}")
    k(f"v_lshl_add_u32 v{c2}, v{c2}, 4, v{G}")
    k(f"v_add3_u32 v{c2}, v{c2}, v{i_}, 16")
    k(f"v_cmp_eq_u32 vcc, 4, v{tt}")
    k("s_nop 1")
    k(f"v_cndmask_b32 v{col}, v{col}, v{c2}, vcc")
    k(f"v_lshl_add_u32 v{c2}, v{T}, 5, v{i_}")
    k(f"v_cmp_le_u32 vcc, 40, v{T}")
    k("s_nop 1")
    k(f"v_cndmask_b32 v{col}, v{col}, v{c2}, vcc")
    k(f"v_mul_u32_u24 v{vin}, {8*3840}, v{h}")
    k(f"v_lshl_add_u32 v{vin}, v{col}, 1, v{vin}")
    k(f"s_mul_i32 s{st}, s{sS}, {16*3840}")
    k(f"v_add_u32 v{vin}, s{st}, v{vin}")
    k(f"v_mul_u32_u24 v{vout}, {40*1024}, v{T}")
    k(f"v_lshl_add_u32 v{c2}, v{h}, 5, v{i_}")
    k(f"v_lshl_add_u32 v{vout}, v{c2}, 4, v{vout}")
    so = [k.s() for _ in range(16)]
    for j in range(16):
        k(f"s_mov_b32 s{so[j]}, {((j//8)*16 + j%8)*3840}")
    sl, sh, so0, so1 = k.s(), k.s(), k.s(), k.s()
    k(f"s_mov_b32 s{sl}, 0x05040100")
    k(f"s_mov_b32 s{sh}, 0x07060302")
    k(f"s_lshl_b32 s{so0}, s{sS}, 10")
    k(f"s_add_u32 s{so0}, s{so0}, {L.WQKV}")
    k(f"s_add_u32 s{so1}, s{so0}, 1024")
    A = k.v(16, 4); Tm = k.v(16, 4)
    k("s_waitcnt lgkmcnt(0)")
    repack_loads(k, A, vin, wq, [f"s{x}" for x in so[:8]])
    repack_loads(k, A+8, vin, wq, [f"s{x}" for x in so[8:]])
    k("s_waitcnt vmcnt(8)")
    repack_store(k, A, Tm, sl, sh, vout, ws, f"s{so0}")
    k("s_waitcnt vmcnt(2)")
    repack_store(k, A+8, Tm+8, sl, sh, vout, ws, f"s{so1}")
    k(f"{Lend}:")
    k("s_endpgm")
    return k

def swap_add(k, a, b, which):
    k(f"v_mov_b32 v{b}, v{a}")
    k("s_nop 1")
    k(f"v_permlane{which}_swap_b32 v{a}, v{b}")
    k(f"v_add_f32 v{a}, v{a}, v{b}")

def gen_k1b():
    k = Kernel("k1b_kernel", 256, 320, 5632)
    Lend, Lskip = k.label("end"), k.label("skip")
    k(f"s_cmp_ge_u32 s2, 256")
    k(f"s_cbranch_scc1 {Lend}")
    ws = load_srd(k, L.A_WS, L.WS_USED)
    xs = load_srd(k, L.A_X, 2048*1280)
    sw, lane = wave_id(k)
    st, srow = k.s(), k.s()
    r, ch, vx, vp, vo = [k.v() for _ in range(5)]
    k(f"v_and_b32 v{r}, 7, v{lane}")
    k(f"v_lshrrev_b32 v{ch}, 3, v{lane}")
    k(f"s_lshl_b32 s{st}, s{sw}, 4")
    k(f"v_add_u32 v{ch}, s{st}, v{ch}")
    k(f"v_mul_u32_u24 v{vx}, 1280, v{r}")
    k(f"v_lshl_add_u32 v{vx}, v{ch}, 4, v{vx}")
    k(f"s_mul_i32 s{srow}, s2, {8*1280}")
    k(f"v_lshlrev_b32 v{vp}, 4, v0")
    X = k.v(8, 4); P = k.v(16, 4)
    sp = [k.s() for _ in range(4)]
    for p in range(4):
        k(f"s_mov_b32 s{sp[p]}, {L.MODP + p*3840*4}")
    k("s_waitcnt lgkmcnt(0)")
    for p in range(4):
        k(f"buffer_load_dwordx4 v[{P+4*p}:{P+4*p+3}], v{vp}, s[{ws}:{ws+3}], s{sp[p]} offen")
    k(f"buffer_load_dwordx4 v[{X}:{X+3}], v{vx}, s[{xs}:{xs+3}], s{srow} offen")
    k(f"buffer_load_dwordx4 v[{X+4}:{X+7}], v{vx}, s[{xs}:{xs+3}], s{srow} offen offset:128")
    t1 = k.v()
    k(f"v_lshrrev_b32 v{vo}, 1, v{ch}")
    k(f"v_lshlrev_b32 v{vo}, 10, v{vo}")
    k(f"v_and_b32 v{t1}, 1, v{ch}")
    k(f"v_lshl_add_u32 v{vo}, v{t1}, 9, v{vo}")
    k(f"v_lshl_add_u32 v{vo}, v{r}, 4, v{vo}")
    so0, so1 = k.s(), k.s()
    k(f"s_lshr_b32 s{so0}, s2, 2")
    k(f"s_mul_i32 s{so0}, s{so0}, {40*1024}")
    k(f"s_and_b32 s{st}, s2, 3")
    k(f"s_lshl_b32 s{st}, s{st}, 7")
    k(f"s_add_u32 s{so0}, s{so0}, s{st}")
    k(f"s_add_u32 s{so0}, s{so0}, {L.HH}")
    k(f"s_add_u32 s{so1}, s{so0}, 4096")
    k("s_waitcnt vmcnt(2)")
    for e in range(4):
        k(f"v_add_f32 v{P+e}, v{P+e}, v{P+4+e}")
        k(f"v_add_f32 v{P+8+e}, v{P+8+e}, v{P+12+e}")
    for e in range(4):
        k(f"v_add_f32 v{P+e}, v{P+e}, v{P+8+e}")
    k(f"v_cvt_pk_bf16_f32 v{P+4}, v{P}, v{P+1}")
    k(f"v_cvt_pk_bf16_f32 v{P+5}, v{P+2}, v{P+3}")
    k(f"v_lshlrev_b32 v{P}, 16, v{P+4}")
    k(f"v_and_b32 v{P+1}, 0xffff0000, v{P+4}")
    k(f"v_lshlrev_b32 v{P+2}, 16, v{P+5}")
    k(f"v_and_b32 v{P+3}, 0xffff0000, v{P+5}")
    k(f"v_cmp_le_u32 vcc, 160, v0")
    k(f"v_mov_b32 v{P+8}, 0")
    k(f"v_mov_b32 v{P+9}, 1.0")
    k(f"v_cndmask_b32 v{P+8}, v{P+8}, v{P+9}, vcc")
    for e in range(4):
        k(f"v_add_f32 v{P+e}, v{P+e}, v{P+8}")
    k(f"v_cvt_pk_bf16_f32 v{P+4}, v{P}, v{P+1}")
    k(f"v_cvt_pk_bf16_f32 v{P+5}, v{P+2}, v{P+3}")
    k(f"v_lshlrev_b32 v{P}, 16, v{P+4}")
    k(f"v_and_b32 v{P+1}, 0xffff0000, v{P+4}")
    k(f"v_lshlrev_b32 v{P+2}, 16, v{P+5}")
    k(f"v_and_b32 v{P+3}, 0xffff0000, v{P+5}")
    k(f"ds_write_b128 v{vp}, v[{P}:{P+3}]")
    sm, sq, tmp = k.v(2, 2), None, k.v()
    sq = sm + 1
    ones = k.s()
    k(f"s_mov_b32 s{ones}, 0x3f803f80")
    k(f"v_mov_b32 v{sm}, 0")
    k(f"v_mov_b32 v{sq}, 0")
    k("s_waitcnt vmcnt(0)")
    for d in range(8):
        k(f"v_dot2_f32_bf16 v{sm}, v{X+d}, s{ones}, v{sm}")
        k(f"v_dot2_f32_bf16 v{sq}, v{X+d}, v{X+d}, v{sq}")
    k("s_nop 2")
    k(f"v_add_f32_dpp v{sm}, v{sm}, v{sm} row_ror:8 row_mask:0xf bank_mask:0xf")
    k(f"v_add_f32_dpp v{sq}, v{sq}, v{sq} row_ror:8 row_mask:0xf bank_mask:0xf")
    for w in (16, 32):
        swap_add(k, sm, tmp, w)
        swap_add(k, sq, tmp, w)
    va = k.v()
    k(f"s_lshl_b32 s{st}, s{sw}, 6")
    k(f"v_lshl_add_u32 v{va}, v{r}, 3, s{st}")
    k(f"ds_write_b64 v{va}, v[{sm}:{sm+1}] offset:5120")
    k("s_waitcnt lgkmcnt(0)")
    k("s_barrier")
    ST = k.v(10, 2); TS = k.v(16, 4); TG = k.v(16, 4)
    k(f"v_lshlrev_b32 v{va}, 3, v{r}")
    for w in range(5):
        k(f"ds_read_b64 v[{ST+2*w}:{ST+2*w+1}], v{va} offset:{5120+64*w}")
    k(f"v_lshlrev_b32 v{va}, 5, v{ch}")
    for i in range(2):
        for q in range(2):
            k(f"ds_read_b128 v[{TS+8*i+4*q}:{TS+8*i+4*q+3}], v{va} offset:{256*i+16*q}")
            k(f"ds_read_b128 v[{TG+8*i+4*q}:{TG+8*i+4*q+3}], v{va} offset:{2560+256*i+16*q}")
    k("s_waitcnt lgkmcnt(8)")
    for c in range(2):
        k(f"v_add_f32 v{ST+c}, v{ST+c}, v{ST+2+c}")
        k(f"v_add_f32 v{ST+4+c}, v{ST+4+c}, v{ST+6+c}")
    for c in range(2):
        k(f"v_add_f32 v{ST+c}, v{ST+c}, v{ST+8+c}")
    for c in range(2):
        k(f"v_add_f32 v{ST+c}, v{ST+c}, v{ST+4+c}")
    inv = 0x3acccccd
    k(f"v_mul_f32 v{ST}, {inv:#x}, v{ST}")
    k(f"v_mul_f32 v{ST+1}, {inv:#x}, v{ST+1}")
    k(f"v_fma_f32 v{ST+1}, -v{ST}, v{ST}, v{ST+1}")
    k(f"v_max_f32 v{ST+1}, 0, v{ST+1}")
    k(f"v_add_f32 v{ST+1}, 0x3727c5ac, v{ST+1}")
    k(f"v_rsq_f32 v{ST+1}, v{ST+1}")
    k("s_nop 0")
    k(f"v_mul_f32 v{ST}, v{ST}, v{ST+1}")
    k("s_waitcnt lgkmcnt(0)")
    U = P
    for d in range(8):
        k(f"v_lshlrev_b32 v{U+2*d}, 16, v{X+d}")
        k(f"v_and_b32 v{U+2*d+1}, 0xffff0000, v{X+d}")
    for e in range(16):
        k(f"v_fma_f32 v{U+e}, v{U+e}, v{ST+1}, -v{ST}")
    for e in range(16):
        k(f"v_fma_f32 v{U+e}, v{U+e}, v{TG+e}, v{TS+e}")
    for d in range(8):
        k(f"v_cvt_pk_bf16_f32 v{X+d}, v{U+2*d}, v{U+2*d+1}")
    k(f"buffer_store_dwordx4 v[{X}:{X+3}], v{vo}, s[{ws}:{ws+3}], s{so0} offen{SC('k1')}")
    k(f"buffer_store_dwordx4 v[{X+4}:{X+7}], v{vo}, s[{ws}:{ws+3}], s{so1} offen{SC('k1')}")
    k(f"s_cmp_ge_u32 s2, 8")
    k(f"s_cbranch_scc1 {Lend}")
    n = vp
    k(f"s_mul_i32 s{st}, s2, 320")
    k(f"s_add_u32 s{st}, s{st}, 1280")
    k(f"v_add_u32 v{n}, s{st}, v0")
    k(f"v_lshlrev_b32 v{vx}, 2, v{n}")
    for p in range(4):
        k(f"buffer_load_dword v{TS+p}, v{vx}, s[{ws}:{ws+3}], s{sp[p]} offen")
    sadd, ssec = k.s(), k.s()
    k(f"s_lshr_b32 s{ssec}, s2, 1")
    k(f"s_cmp_eq_u32 s{ssec}, 2")
    k(f"s_cselect_b32 s{sadd}, 1.0, 0")
    k("s_waitcnt vmcnt(0)")
    k(f"v_add_f32 v{TS}, v{TS}, v{TS+1}")
    k(f"v_add_f32 v{TS+2}, v{TS+2}, v{TS+3}")
    k(f"v_add_f32 v{TS}, v{TS}, v{TS+2}")
    k(f"v_cvt_pk_bf16_f32 v{TS}, v{TS}, v{TS}")
    k(f"v_lshlrev_b32 v{TS}, 16, v{TS}")
    k(f"v_add_f32 v{TS}, s{sadd}, v{TS}")
    k(f"v_cvt_pk_bf16_f32 v{TS+1}, v{TS}, v{TS}")
    k(f"v_lshlrev_b32 v{TS}, 16, v{TS+1}")
    k(f"s_mov_b32 s{st}, {L.MODF}")
    k(f"buffer_store_dword v{TS}, v{vx}, s[{ws}:{ws+3}], s{st} offen")
    k(f"s_sub_u32 s{sadd}, s{ssec}, 1")
    k(f"s_cmp_ge_u32 s{sadd}, 2")
    k(f"s_cbranch_scc1 {Lend}")
    k(f"s_and_b32 s{st}, s2, 1")
    k(f"s_mul_i32 s{st}, s{st}, 320")
    k(f"v_add_u32 v{n}, s{st}, v0")
    k(f"v_lshrrev_b32 v{vx}, 4, v{n}")
    k(f"v_lshlrev_b32 v{vx}, 6, v{vx}")
    k(f"v_bfe_u32 v{t1}, v{n}, 2, 1")
    k(f"v_lshl_add_u32 v{vx}, v{t1}, 5, v{vx}")
    k(f"v_bfe_u32 v{t1}, v{n}, 3, 1")
    k(f"v_lshl_add_u32 v{vx}, v{t1}, 3, v{vx}")
    k(f"v_and_b32 v{t1}, 3, v{n}")
    k(f"v_lshl_add_u32 v{vx}, v{t1}, 1, v{vx}")
    k(f"s_xor_b32 s{sadd}, s{sadd}, 1")
    k(f"s_lshl_b32 s{sadd}, s{sadd}, 4")
    k(f"s_add_u32 s{sadd}, s{sadd}, {L.SP}")
    k(f"buffer_store_short v{TS+1}, v{vx}, s[{ws}:{ws+3}], s{sadd} offen")
    k(f"{Lend}:")
    k("s_endpgm")
    return k
```

```python
S, D, H, DH, F = 2048, 640, 32, 20, 1728
def _al(x): return (x + 4095) // 4096 * 4096
_o = 0
def _take(n):
    global _o
    b = _o; _o = _al(_o + n); return b
SZ_MODP = 2*3840*4
SZ_MODF = 3840*4
SZ_SP = 2560
SZ_H = 64*40*1024
SZ_WQKV = 60*40*1024
SZ_Q = 32*64*1280
KVT = 2560
SZ_KV = 32*64*KVT + 1024
SZ_O = 64*40*1024
SZ_WO = 40*20*1024
SZ_WGU = 108*40*1024
SZ_WD = 40*54*1024
SZ_Y2 = 64*40*1024
SZ_X2 = 2048*640*2
SZ_ST = 2048*8*2*4
SZ_UT = 108*1024
SZ_ACT = 64*108*1024
SZ_UTP = 108*2560 + 4096
SZ_CNT = 8192
MODP = _take(SZ_MODP); MODF = _take(SZ_MODF); SP = _take(SZ_SP); HH = _take(SZ_H); WQKV = _take(SZ_WQKV)
Q = _take(SZ_Q); KV = _take(SZ_KV); O = _take(SZ_O); WO = _take(SZ_WO); WGU = _take(SZ_WGU); WD = _take(SZ_WD)
Y2 = _take(SZ_Y2); X2 = _take(SZ_X2); ST = _take(SZ_ST); UT = _take(SZ_UT); ACT = _take(SZ_ACT); UTP = _take(SZ_UTP); CNT = _take(SZ_CNT)
WS_USED = _o
A_X, A_WQKV, A_WO, A_WG, A_WU, A_WD, A_C, A_WMOD, A_OUT, A_DBG, A_WS = 0, 8, 16, 32, 40, 48, 56, 64, 72, 80, 88
```

```python
from asmlib import *
import layout as L
import os
def SC(name):
    return ' sc1' if name in os.environ.get('SC1', '').split(',') else ''

def srd(k, dst, ptr, size):
    k(f"s_mov_b32 s{dst}, s{ptr}")
    k(f"s_mov_b32 s{dst+1}, s{ptr+1}")
    k(f"s_mov_b32 s{dst+2}, {size}")
    k(f"s_mov_b32 s{dst+3}, 0x20000")

def load_srd(k, argoff, size):
    d = k.s(4, 4)
    k(f"s_load_dwordx2 s[{d}:{d+1}], s[0:1], {argoff}")
    k(f"s_mov_b32 s{d+2}, {size}")
    k(f"s_mov_b32 s{d+3}, 0x20000")
    return d

def wave_id(k):
    sw = k.s()
    t = k.v()
    k(f"v_lshrrev_b32 v{t}, 6, v0")
    lane = k.v()
    k(f"v_and_b32 v{lane}, 63, v0")
    k(f"v_readfirstlane_b32 s{sw}, v{t}")
    return sw, lane

def repack_loads(k, dst8, voff, src_srd, soffs, fl=''):
    for j in range(8):
        so = soffs[j]
        k(f"buffer_load_dword v{dst8+j}, v{voff}, s[{src_srd}:{src_srd+3}], {so} offen{fl}")

def repack_store(k, src8, tmp8, sel_lo, sel_hi, voff_out, ws_srd, soff_out, fl=''):
    for d in range(4):
        k(f"v_perm_b32 v{tmp8+d}, v{src8+2*d+1}, v{src8+2*d}, s{sel_lo}")
    for d in range(4):
        k(f"v_perm_b32 v{tmp8+4+d}, v{src8+2*d+1}, v{src8+2*d}, s{sel_hi}")
    k(f"buffer_store_dwordx4 v[{tmp8}:{tmp8+3}], v{voff_out}, s[{ws_srd}:{ws_srd+3}], {soff_out} offen{fl}")
    k(f"buffer_store_dwordx4 v[{tmp8+4}:{tmp8+7}], v{voff_out}, s[{ws_srd}:{ws_srd+3}], {soff_out} offen offset:16{fl}")

class Tracker:
    def __init__(self, k, name, cap):
        self.k, self.name, self.cap, self.q = k, name, cap, []
    def issue(self, tag=None): self.q.append(tag)
    def need(self, tag):
        idx = [i for i, t in enumerate(self.q) if t == tag]
        if not idx: return
        n = min(len(self.q) - 1 - idx[-1], self.cap)
        self.k(f"s_waitcnt {self.name}({n})")
        self.q = self.q[len(self.q) - n:] if n else []

def hilo(k, a, b, out4, t4, side_a=True):
    ah, bh, al, bl = t4, t4+1, t4+2, t4+3
    k(f"v_cvt_pk_bf16_f32 v{out4+3}, v{a}, v{b}")
    k(f"v_lshlrev_b32 v{ah}, 16, v{out4+3}")
    k(f"v_and_b32 v{bh}, 0xffff0000, v{out4+3}")
    k(f"v_sub_f32 v{al}, v{a}, v{ah}")
    k(f"v_sub_f32 v{bl}, v{b}, v{bh}")
    if side_a:
        k(f"v_cvt_pk_bf16_f32 v{out4}, v{ah}, v{al}")
        k(f"v_mov_b32 v{out4+1}, v{out4+3}")
        k(f"v_cvt_pk_bf16_f32 v{out4+2}, v{bl}, v{bh}")
    else:
        k(f"v_cvt_pk_bf16_f32 v{out4}, v{ah}, v{ah}")
        k(f"v_cvt_pk_bf16_f32 v{out4+1}, v{al}, v{bh}")
        k(f"v_cvt_pk_bf16_f32 v{out4+2}, v{bh}, v{bl}")
    k(f"v_mov_b32 v{out4+3}, 0")
```

```python
from common import *
LOG2E = 0x3fb8aa3b
NT = '' if os.environ.get('K1NONT') else ' nt'
NG, NL, NR = 120, 256, 120

def swap_add(k, a, b, which):
    k(f"v_mov_b32 v{b}, v{a}")
    k("s_nop 1")
    k(f"v_permlane{which}_swap_b32 v{a}, v{b}")
    k(f"v_add_f32 v{a}, v{a}, v{b}")

def gen_k1():
    NP = 8 if os.environ.get('K1PF', '1') == '1' else 0
    k = Kernel("k1_kernel", NG + NL + NR + NP, 320, 5632)
    Lrep, Lln, Lend, Lpf = k.label("rep"), k.label("ln"), k.label("end"), k.label("pf")
    k(f"s_cmp_ge_u32 s2, {NG + NL + NR}")
    k(f"s_cbranch_scc1 {Lpf}")
    ws = load_srd(k, L.A_WS, L.WS_USED)
    k(f"s_cmp_ge_u32 s2, {NG + NL}")
    k(f"s_cbranch_scc1 {Lrep}")
    k(f"s_cmp_ge_u32 s2, {NG}")
    k(f"s_cbranch_scc1 {Lln}")
    if os.environ.get('K1SKIP'):
        k(f"s_cmp_ge_u32 s2, 40")
        k(f"s_cbranch_scc1 {Lend}")
    s0, v0_ = k.snext, k.vnext
    wm = load_srd(k, L.A_WMOD, 640*3840*2)
    cs = load_srd(k, L.A_C, 1280)
    sw, lane = wave_id(k)
    skh, sstrip, st = k.s(), k.s(), k.s()
    k(f"s_and_b32 s{skh}, s2, 1")
    k(f"s_lshr_b32 s{sstrip}, s2, 1")
    row, vw, vc, t = k.v(), k.v(), k.v(), k.v()
    k(f"s_mul_i32 s{st}, s{skh}, 320")
    k(f"v_lshrrev_b32 v{row}, 3, v0")
    k(f"v_add_u32 v{row}, s{st}, v{row}")
    k(f"v_lshlrev_b32 v{vc}, 1, v{row}")
    k(f"v_mul_u32_u24 v{vw}, 7680, v{row}")
    k(f"v_and_b32 v{t}, 7, v0")
    k(f"v_lshl_add_u32 v{vw}, v{t}, 4, v{vw}")
    k(f"s_lshl_b32 s{st}, s{sstrip}, 7")
    k(f"v_add_u32 v{vw}, s{st}, v{vw}")
    so = [k.s() for _ in range(8)]
    for i in range(8):
        k(f"s_mov_b32 s{so[i]}, {i*40*7680}")
    W = k.v(32, 4); C = k.v(8); acc = k.v(8, 4); u = k.v(8)
    k("s_waitcnt lgkmcnt(0)")
    for i in range(8):
        k(f"buffer_load_ushort v{C+i}, v{vc}, s[{cs}:{cs+3}], 0 offen offset:{80*i}")
    for i in range(8):
        k(f"buffer_load_dwordx4 v[{W+4*i}:{W+4*i+3}], v{vw}, s[{wm}:{wm+3}], s{so[i]} offen{NT}")
    for j in range(8):
        k(f"v_mov_b32 v{acc+j}, 0")
    k("s_waitcnt vmcnt(8)")
    for i in range(8): k(f"v_lshlrev_b32 v{C+i}, 16, v{C+i}")
    for i in range(8): k(f"v_mul_f32 v{u+i}, {LOG2E ^ 0x80000000:#x}, v{C+i}")
    for i in range(8): k(f"v_exp_f32 v{u+i}, v{u+i}")
    for i in range(8): k(f"v_add_f32 v{u+i}, 1.0, v{u+i}")
    for i in range(8): k(f"v_rcp_f32 v{u+i}, v{u+i}")
    for i in range(8): k(f"v_mul_f32 v{C+i}, v{C+i}, v{u+i}")
    for i in range(0, 8, 2): k(f"v_cvt_pk_bf16_f32 v{u+i}, v{C+i}, v{C+i+1}")
    for i in range(0, 8, 2):
        k(f"v_lshlrev_b32 v{C+i}, 16, v{u+i}")
        k(f"v_and_b32 v{C+i+1}, 0xffff0000, v{u+i}")
    for i in range(8):
        k(f"s_waitcnt vmcnt({7-i})")
        for d in range(4):
            k(f"v_lshlrev_b32 v{u+2*d}, 16, v{W+4*i+d}")
            k(f"v_and_b32 v{u+2*d+1}, 0xffff0000, v{W+4*i+d}")
        for j in range(8):
            k(f"v_fmac_f32 v{acc+j}, v{C+i}, v{u+j}")
    k.stamp(0)
    k("s_nop 1")
    for j in range(8):
        k(f"v_add_f32_dpp v{acc+j}, v{acc+j}, v{acc+j} row_ror:8 row_mask:0xf bank_mask:0xf")
    k(f"v_lshrrev_b32 v{row}, 4, v0")
    k(f"v_lshlrev_b32 v{row}, 8, v{row}")
    k(f"v_lshl_add_u32 v{row}, v{t}, 5, v{row}")
    k(f"ds_write_b128 v{row}, v[{acc}:{acc+3}]")
    k(f"ds_write_b128 v{row}, v[{acc+4}:{acc+7}] offset:16")
    k("s_waitcnt lgkmcnt(0)")
    k("s_barrier")
    k(f"s_cmp_lg_u32 s{sw}, 0")
    k(f"s_cbranch_scc1 {Lend}")
    k(f"v_lshlrev_b32 v{row}, 2, v{lane}")
    for p in range(0, 20, 2):
        k(f"ds_read2st64_b32 v[{W+p}:{W+p+1}], v{row} offset0:{p} offset1:{p+1}")
    k(f"s_mul_i32 s{st}, s{skh}, {3840*4}")
    k(f"s_lshl_b32 s{sstrip}, s{sstrip}, 8")
    k(f"s_add_u32 s{st}, s{st}, s{sstrip}")
    k(f"s_add_u32 s{st}, s{st}, {L.MODP}")
    k("s_waitcnt lgkmcnt(0)")
    for p in range(10): k(f"v_add_f32 v{W+p}, v{W+p}, v{W+p+10}")
    for p in range(5): k(f"v_add_f32 v{W+p}, v{W+p}, v{W+p+5}")
    k(f"v_add_f32 v{W}, v{W}, v{W+1}")
    k(f"v_add_f32 v{W+2}, v{W+2}, v{W+3}")
    k(f"v_add_f32 v{W}, v{W}, v{W+4}")
    k(f"v_add_f32 v{W}, v{W}, v{W+2}")
    k(f"buffer_store_dword v{W}, v{row}, s[{ws}:{ws+3}], s{st} offen")
    k("s_endpgm")
    k.cut()
    k(f"{Lrep}:")
    k.vnext = v0_; k.snext = s0
    wq = load_srd(k, L.A_WQKV, 640*1920*2)
    sw, lane = wave_id(k)
    sW, sTT, sS, st = k.s(), k.s(), k.s(), k.s()
    k(f"s_sub_u32 s{sW}, s2, {NG + NL}")
    k(f"s_mul_i32 s{sW}, s{sW}, 5")
    k(f"s_add_u32 s{sW}, s{sW}, s{sw}")
    k(f"s_mul_i32 s{sS}, s{sW}, 2185")
    k(f"s_lshr_b32 s{sS}, s{sS}, 16")
    k(f"s_mul_i32 s{st}, s{sS}, 30")
    k(f"s_sub_u32 s{sTT}, s{sW}, s{st}")
    k(f"s_lshl_b32 s{sTT}, s{sTT}, 1")
    k(f"s_lshl_b32 s{sS}, s{sS}, 1")
    T, G, tt, i_, h, col, c2, vin, vout = [k.v() for _ in range(9)]
    k(f"v_lshrrev_b32 v{T}, 5, v{lane}")
    k(f"v_add_u32 v{T}, s{sTT}, v{T}")
    k(f"v_and_b32 v{i_}, 15, v{lane}")
    k(f"v_lshlrev_b32 v{i_}, 1, v{i_}")
    k(f"v_bfe_u32 v{h}, v{lane}, 4, 1")
    k(f"v_mul_u32_u24 v{G}, 205, v{T}")
    k(f"v_lshrrev_b32 v{G}, 10, v{G}")
    k(f"v_mul_u32_u24 v{tt}, 5, v{G}")
    k(f"v_sub_u32 v{tt}, v{T}, v{tt}")
    k(f"v_mul_u32_u24 v{G}, 160, v{G}")
    k(f"v_mul_u32_u24 v{col}, 40, v{tt}")
    k(f"v_add_u32 v{col}, v{col}, v{G}")
    k(f"v_lshrrev_b32 v{c2}, 4, v{i_}")
    k(f"v_lshl_add_u32 v{col}, v{c2}, 2, v{col}")
    k(f"v_add_u32 v{col}, v{col}, v{i_}")
    k(f"v_lshrrev_b32 v{c2}, 2, v{i_}")
    k(f"v_lshl_add_u32 v{c2}, v{c2}, 4, v{G}")
    k(f"v_add3_u32 v{c2}, v{c2}, v{i_}, 16")
    k(f"v_cmp_eq_u32 vcc, 4, v{tt}")
    k("s_nop 1")
    k(f"v_cndmask_b32 v{col}, v{col}, v{c2}, vcc")
    k(f"v_lshl_add_u32 v{c2}, v{T}, 5, v{i_}")
    k(f"v_cmp_le_u32 vcc, 40, v{T}")
    k("s_nop 1")
    k(f"v_cndmask_b32 v{col}, v{col}, v{c2}, vcc")
    k(f"v_mul_u32_u24 v{vin}, {8*3840}, v{h}")
    k(f"v_lshl_add_u32 v{vin}, v{col}, 1, v{vin}")
    k(f"s_mul_i32 s{st}, s{sS}, {16*3840}")
    k(f"v_add_u32 v{vin}, s{st}, v{vin}")
    k(f"v_mul_u32_u24 v{vout}, {40*1024}, v{T}")
    k(f"v_lshl_add_u32 v{c2}, v{h}, 5, v{i_}")
    k(f"v_lshl_add_u32 v{vout}, v{c2}, 4, v{vout}")
    so = [k.s() for _ in range(16)]
    for j in range(16):
        k(f"s_mov_b32 s{so[j]}, {((j//8)*16 + j%8)*3840}")
    sl, sh, so0, so1 = k.s(), k.s(), k.s(), k.s()
    k(f"s_mov_b32 s{sl}, 0x05040100")
    k(f"s_mov_b32 s{sh}, 0x07060302")
    k(f"s_lshl_b32 s{so0}, s{sS}, 10")
    k(f"s_add_u32 s{so0}, s{so0}, {L.WQKV}")
    k(f"s_add_u32 s{so1}, s{so0}, 1024")
    A = k.v(16, 4); Tm = k.v(16, 4)
    k("s_waitcnt lgkmcnt(0)")
    repack_loads(k, A, vin, wq, [f"s{x}" for x in so[:8]], NT)
    repack_loads(k, A+8, vin, wq, [f"s{x}" for x in so[8:]], NT)
    k("s_waitcnt vmcnt(8)")
    repack_store(k, A, Tm, sl, sh, vout, ws, f"s{so0}")
    k("s_waitcnt vmcnt(2)")
    repack_store(k, A+8, Tm+8, sl, sh, vout, ws, f"s{so1}")
    k("s_endpgm")
    k.cut()
    k(f"{Lln}:")
    k.vnext = v0_; k.snext = s0
    xs = load_srd(k, L.A_X, 2048*1280)
    sw, lane = wave_id(k)
    st, srow, sid = k.s(), k.s(), k.s()
    k(f"s_sub_u32 s{sid}, s2, {NG}")
    r, ch, vx, vp, vo = [k.v() for _ in range(5)]
    k(f"v_and_b32 v{r}, 7, v{lane}")
    k(f"v_lshrrev_b32 v{ch}, 3, v{lane}")
    k(f"s_lshl_b32 s{st}, s{sw}, 4")
    k(f"v_add_u32 v{ch}, s{st}, v{ch}")
    k(f"v_mul_u32_u24 v{vx}, 1280, v{r}")
    k(f"v_lshl_add_u32 v{vx}, v{ch}, 4, v{vx}")
    k(f"s_mul_i32 s{srow}, s{sid}, {8*1280}")
    X = k.v(8, 4)
    k("s_waitcnt lgkmcnt(0)")
    k(f"buffer_load_dwordx4 v[{X}:{X+3}], v{vx}, s[{xs}:{xs+3}], s{srow} offen")
    k(f"buffer_load_dwordx4 v[{X+4}:{X+7}], v{vx}, s[{xs}:{xs+3}], s{srow} offen offset:128")
    t1 = k.v()
    k(f"v_lshrrev_b32 v{vo}, 1, v{ch}")
    k(f"v_lshlrev_b32 v{vo}, 10, v{vo}")
    k(f"v_and_b32 v{t1}, 1, v{ch}")
    k(f"v_lshl_add_u32 v{vo}, v{t1}, 9, v{vo}")
    k(f"v_lshl_add_u32 v{vo}, v{r}, 4, v{vo}")
    so0, so1 = k.s(), k.s()
    k(f"s_lshr_b32 s{so0}, s{sid}, 2")
    k(f"s_mul_i32 s{so0}, s{so0}, {40*1024}")
    k(f"s_and_b32 s{st}, s{sid}, 3")
    k(f"s_lshl_b32 s{st}, s{st}, 7")
    k(f"s_add_u32 s{so0}, s{so0}, s{st}")
    k(f"s_add_u32 s{so0}, s{so0}, {L.HH}")
    k(f"s_add_u32 s{so1}, s{so0}, 4096")
    sm, tmp = k.v(2, 2), k.v()
    sq = sm + 1
    ones = k.s()
    k(f"s_mov_b32 s{ones}, 0x3f803f80")
    k(f"v_mov_b32 v{sm}, 0")
    k(f"v_mov_b32 v{sq}, 0")
    k("s_waitcnt vmcnt(0)")
    for d in range(8):
        k(f"v_dot2_f32_bf16 v{sm}, v{X+d}, s{ones}, v{sm}")
        k(f"v_dot2_f32_bf16 v{sq}, v{X+d}, v{X+d}, v{sq}")
    k("s_nop 2")
    k(f"v_add_f32_dpp v{sm}, v{sm}, v{sm} row_ror:8 row_mask:0xf bank_mask:0xf")
    k(f"v_add_f32_dpp v{sq}, v{sq}, v{sq} row_ror:8 row_mask:0xf bank_mask:0xf")
    for w in (16, 32):
        swap_add(k, sm, tmp, w)
        swap_add(k, sq, tmp, w)
    va = k.v()
    k(f"s_lshl_b32 s{st}, s{sw}, 6")
    k(f"v_lshl_add_u32 v{va}, v{r}, 3, s{st}")
    k(f"ds_write_b64 v{va}, v[{sm}:{sm+1}] offset:5120")
    k("s_waitcnt lgkmcnt(0)")
    k("s_barrier")
    ST = k.v(10, 2); U = k.v(16, 4)
    k(f"v_lshlrev_b32 v{va}, 3, v{r}")
    for w in range(5):
        k(f"ds_read_b64 v[{ST+2*w}:{ST+2*w+1}], v{va} offset:{5120+64*w}")
    for d in range(8):
        k(f"v_lshlrev_b32 v{U+2*d}, 16, v{X+d}")
        k(f"v_and_b32 v{U+2*d+1}, 0xffff0000, v{X+d}")
    k("s_waitcnt lgkmcnt(0)")
    for c in range(2):
        k(f"v_add_f32 v{ST+c}, v{ST+c}, v{ST+2+c}")
        k(f"v_add_f32 v{ST+4+c}, v{ST+4+c}, v{ST+6+c}")
    for c in range(2):
        k(f"v_add_f32 v{ST+c}, v{ST+c}, v{ST+8+c}")
    for c in range(2):
        k(f"v_add_f32 v{ST+c}, v{ST+c}, v{ST+4+c}")
    inv = 0x3acccccd
    k(f"v_mul_f32 v{ST}, {inv:#x}, v{ST}")
    k(f"v_mul_f32 v{ST+1}, {inv:#x}, v{ST+1}")
    k(f"v_fma_f32 v{ST+1}, -v{ST}, v{ST}, v{ST+1}")
    k(f"v_max_f32 v{ST+1}, 0, v{ST+1}")
    k(f"v_add_f32 v{ST+1}, 0x3727c5ac, v{ST+1}")
    k(f"v_rsq_f32 v{ST+1}, v{ST+1}")
    k("s_nop 0")
    k(f"v_mul_f32 v{ST}, v{ST}, v{ST+1}")
    for e in range(16):
        k(f"v_fma_f32 v{U+e}, v{U+e}, v{ST+1}, -v{ST}")
    for i in range(2):
        for d in range(4*i, 4*i + 4):
            k(f"v_cvt_pk_f16_f32 v{X+d}, v{U+2*d}, v{U+2*d+1}")
        k(f"buffer_store_dwordx4 v[{X+4*i}:{X+4*i+3}], v{vo}, s[{ws}:{ws+3}], s{(so0, so1)[i]} offen{SC('k1')}")
    k.stamp(3)
    k("s_endpgm")
    k.cut()
    k(f"{Lpf}:")
    k(f"s_cmp_ge_u32 s2, {NG + NL + NR + NP}")
    k(f"s_cbranch_scc1 {Lend}")
    Lpc = k.label("pc")
    k("s_getpc_b64 s[4:5]")
    k(f"{Lpc}:")
    k(f"s_add_u32 s4, s4, k2_kernel - {Lpc}")
    k(f"s_addc_u32 s5, s5, 0")
    k(f"v_lshlrev_b32 v1, 7, v0")
    for i in range(2):
        k(f"v_min_u32 v2, code_end - k2_kernel - 4, v1")
        k(f"global_load_dword v{3+i}, v2, s[4:5]")
        k(f"v_add_u32 v1, {320*128}, v1")
    k(f"{Lend}:")
    k("s_endpgm")
    return k

def modf_finalize(k, ws, sj, Lend):
    st = k.s(); n, vx, t1, sec = [k.v() for _ in range(4)]; T = k.v(4)
    k(f"s_cmp_ge_u32 s{sj}, 10")
    k(f"s_cbranch_scc1 {Lend}")
    k(f"s_lshl_b32 s{st}, s{sj}, 8")
    k(f"v_add_u32 v{n}, s{st}, v0")
    k(f"v_lshlrev_b32 v{vx}, 2, v{n}")
    k(f"s_mov_b32 s{st}, {L.MODP + 1280*4}")
    k("s_waitcnt lgkmcnt(0)")
    k(f"buffer_load_dword v{T}, v{vx}, s[{ws}:{ws+3}], s{st} offen")
    k(f"s_mov_b32 s{st}, {L.MODP + 1280*4 + 3840*4}")
    k(f"buffer_load_dword v{T+1}, v{vx}, s[{ws}:{ws+3}], s{st} offen")
    k(f"v_mul_u32_u24 v{sec}, 13108, v{n}")
    k(f"v_lshrrev_b32 v{sec}, 23, v{sec}")
    k(f"v_cmp_eq_u32 vcc, 2, v{sec}")
    k(f"v_mov_b32 v{T+2}, 1.0")
    k(f"v_mul_u32_u24 v{t1}, 640, v{sec}")
    k(f"v_cndmask_b32 v{T+2}, 0, v{T+2}, vcc")
    k(f"v_sub_u32 v{n}, v{n}, v{t1}")
    k("s_waitcnt vmcnt(0)")
    k(f"v_add_f32 v{T}, v{T}, v{T+1}")
    k(f"v_cvt_pk_bf16_f32 v{T}, v{T}, v{T}")
    k(f"v_lshlrev_b32 v{T}, 16, v{T}")
    k(f"v_add_f32 v{T}, v{T+2}, v{T}")
    k(f"v_cvt_pk_bf16_f32 v{T+1}, v{T}, v{T}")
    k(f"v_lshlrev_b32 v{T}, 16, v{T+1}")
    k(f"s_mov_b32 s{st}, {L.MODF + 1280*4}")
    k(f"buffer_store_dword v{T}, v{vx}, s[{ws}:{ws+3}], s{st} offen")
    k(f"v_lshrrev_b32 v{vx}, 4, v{n}")
    k(f"v_lshlrev_b32 v{vx}, 6, v{vx}")
    k(f"v_bfe_u32 v{t1}, v{n}, 2, 1")
    k(f"v_lshl_add_u32 v{vx}, v{t1}, 5, v{vx}")
    k(f"v_bfe_u32 v{t1}, v{n}, 3, 1")
    k(f"v_lshl_add_u32 v{vx}, v{t1}, 3, v{vx}")
    k(f"v_and_b32 v{t1}, 3, v{n}")
    k(f"v_lshl_add_u32 v{vx}, v{t1}, 1, v{vx}")
    k(f"v_and_b32 v{t1}, 1, v{sec}")
    k(f"v_lshl_add_u32 v{vx}, v{t1}, 4, v{vx}")
    k(f"v_subrev_u32 v{sec}, 1, v{sec}")
    k(f"v_cmp_gt_u32 vcc, 2, v{sec}")
    k(f"s_mov_b32 s{st}, {L.SP}")
    k(f"s_and_b64 exec, exec, vcc")
    k(f"s_cbranch_execz {Lend}")
    k(f"buffer_store_short v{T+1}, v{vx}, s[{ws}:{ws+3}], s{st} offen")
```

```python
from asmlib import *
import layout as L
import os
def SC(name):
    return ' sc1' if name in os.environ.get('SC1', '').split(',') else ''

def srd(k, dst, ptr, size):
    k(f"s_mov_b32 s{dst}, s{ptr}")
    k(f"s_mov_b32 s{dst+1}, s{ptr+1}")
    k(f"s_mov_b32 s{dst+2}, {size}")
    k(f"s_mov_b32 s{dst+3}, 0x20000")

def load_srd(k, argoff, size):
    d = k.s(4, 4)
    k(f"s_load_dwordx2 s[{d}:{d+1}], s[0:1], {argoff}")
    k(f"s_mov_b32 s{d+2}, {size}")
    k(f"s_mov_b32 s{d+3}, 0x20000")
    return d

def wave_id(k):
    sw = k.s()
    t = k.v()
    k(f"v_lshrrev_b32 v{t}, 6, v0")
    lane = k.v()
    k(f"v_and_b32 v{lane}, 63, v0")
    k(f"v_readfirstlane_b32 s{sw}, v{t}")
    return sw, lane

def repack_loads(k, dst8, voff, src_srd, soffs, fl=''):
    for j in range(8):
        so = soffs[j]
        k(f"buffer_load_dword v{dst8+j}, v{voff}, s[{src_srd}:{src_srd+3}], {so} offen{fl}")

def repack_store(k, src8, tmp8, sel_lo, sel_hi, voff_out, ws_srd, soff_out, fl=''):
    for d in range(4):
        k(f"v_perm_b32 v{tmp8+d}, v{src8+2*d+1}, v{src8+2*d}, s{sel_lo}")
    for d in range(4):
        k(f"v_perm_b32 v{tmp8+4+d}, v{src8+2*d+1}, v{src8+2*d}, s{sel_hi}")
    k(f"buffer_store_dwordx4 v[{tmp8}:{tmp8+3}], v{voff_out}, s[{ws_srd}:{ws_srd+3}], {soff_out} offen{fl}")
    k(f"buffer_store_dwordx4 v[{tmp8+4}:{tmp8+7}], v{voff_out}, s[{ws_srd}:{ws_srd+3}], {soff_out} offen offset:16{fl}")

class Tracker:
    def __init__(self, k, name, cap):
        self.k, self.name, self.cap, self.q = k, name, cap, []
    def issue(self, tag=None): self.q.append(tag)
    def need(self, tag):
        idx = [i for i, t in enumerate(self.q) if t == tag]
        if not idx: return
        n = min(len(self.q) - 1 - idx[-1], self.cap)
        self.k(f"s_waitcnt {self.name}({n})")
        self.q = self.q[len(self.q) - n:] if n else []

def hilo(k, a, b, out4, t4, side_a=True):
    ah, bh, al, bl = t4, t4+1, t4+2, t4+3
    k(f"v_cvt_pk_bf16_f32 v{out4+3}, v{a}, v{b}")
    k(f"v_lshlrev_b32 v{ah}, 16, v{out4+3}")
    k(f"v_and_b32 v{bh}, 0xffff0000, v{out4+3}")
    k(f"v_sub_f32 v{al}, v{a}, v{ah}")
    k(f"v_sub_f32 v{bl}, v{b}, v{bh}")
    if side_a:
        k(f"v_cvt_pk_bf16_f32 v{out4}, v{ah}, v{al}")
        k(f"v_mov_b32 v{out4+1}, v{out4+3}")
        k(f"v_cvt_pk_bf16_f32 v{out4+2}, v{bl}, v{bh}")
    else:
        k(f"v_cvt_pk_bf16_f32 v{out4}, v{ah}, v{ah}")
        k(f"v_cvt_pk_bf16_f32 v{out4+1}, v{al}, v{bh}")
        k(f"v_cvt_pk_bf16_f32 v{out4+2}, v{bh}, v{bl}")
    k(f"v_mov_b32 v{out4+3}, 0")

def code_prefetch(k, nxt, end, sw, wave, vt, sp, n=2):
    Lx, Lpc = k.label("cpf"), k.label("pc")
    k(f"s_cmp_ge_u32 s2, 8")
    k(f"s_cbranch_scc1 {Lx}")
    k(f"s_cmp_lg_u32 s{sw}, {wave}")
    k(f"s_cbranch_scc1 {Lx}")
    k(f"s_getpc_b64 s[{sp}:{sp+1}]")
    k(f"{Lpc}:")
    k(f"s_add_u32 s{sp}, s{sp}, {nxt} - {Lpc}")
    k(f"s_addc_u32 s{sp+1}, s{sp+1}, 0")
    k(f"v_and_b32 v{vt}, 63, v0")
    k(f"v_lshlrev_b32 v{vt}, 7, v{vt}")
    for i in range(n):
        k(f"v_min_u32 v{vt+1}, {end} - {nxt} - 4, v{vt}")
        k(f"global_load_dword v{vt+2+i}, v{vt+1}, s[{sp}:{sp+1}]")
        if i < n - 1: k(f"v_add_u32 v{vt}, 8192, v{vt}")
    k(f"{Lx}:")
```

```python
import re

TRANS = ("v_exp_f32", "v_log_f32", "v_rcp_f32", "v_rsq_f32", "v_sqrt_f32", "v_sin_f32", "v_cos_f32",
         "v_exp_f16", "v_rcp_f16", "v_rcp_iflag_f32")


def parse_reg(tok):
    tok = tok.strip()
    neg = tok.lstrip("-").strip()
    m = re.fullmatch(r"(?:abs\()?\|?([vas])(\d+)\|?\)?", neg)
    if m:
        return [(m.group(1), int(m.group(2)))]
    m = re.fullmatch(r"([vas])\[(\d+):(\d+)\]", neg)
    if m:
        return [(m.group(1), i) for i in range(int(m.group(2)), int(m.group(3)) + 1)]
    if neg in ("vcc", "vcc_lo", "vcc_hi"):
        return [("x", "vcc")]
    if neg in ("exec", "exec_lo", "exec_hi"):
        return [("x", "exec")]
    if neg == "m0":
        return [("x", "m0")]
    return []


class Ins:
    __slots__ = ("text", "mn", "ops", "w", "r", "kind", "passes", "A", "B", "C", "nop", "lds_dma", "wide_store", "dpp",
                 "sdwa")

    def __init__(self, text):
        self.text = text
        t = text.split(";")[0].strip()
        parts = t.split(None, 1)
        self.mn = parts[0]
        rest = parts[1] if len(parts) > 1 else ""
        ops, cur, depth = [], "", 0
        for ch in rest:
            if ch in "[(":
                depth += 1
            if ch in "])":
                depth -= 1
            if ch == "," and depth == 0:
                ops.append(cur.strip())
                cur = ""
            else:
                cur += ch
        if cur.strip():
            ops.append(cur.strip())
        mods = ""
        if ops:
            sp = ops[-1].split(None, 1)
            if len(sp) > 1 and not ops[-1].startswith("hwreg"):
                ops[-1] = sp[0]
                mods = sp[1]
        self.ops = ops
        self.w, self.r = [], []
        self.A = self.B = self.C = []
        self.passes = 0
        self.nop = 1
        self.lds_dma = False
        self.wide_store = False
        self.dpp = ("_dpp" in self.mn) or ("row_" in mods) or ("quad_perm" in mods)
        self.sdwa = "_sdwa" in self.mn
        mn = self.mn
        R = [parse_reg(o) for o in ops]
        if mn == "s_nop":
            self.kind = "nop"
            self.nop = int(ops[0], 0) + 1
        elif mn.startswith("v_mfma") or mn.startswith("v_smfmac"):
            self.kind = "mfma"
            self.passes = 4 if ("16x16x32" in mn or "16x16x16" in mn or "16x16x64" in mn) else 8
            if "32x32x4" in mn:
                self.passes = 16
            self.w = R[0]
            self.A, self.B = R[1], R[2]
            if mn.startswith("v_smfmac"):
                self.C = R[0]
                self.B = R[2] + R[3]
            else:
                self.C = R[3]
            self.r = self.A + self.B + self.C
        elif mn.startswith("v_"):
            self.kind = "trans" if any(mn.startswith(x) for x in TRANS) else "valu"
            base = mn
            if base.startswith("v_permlane") and "swap" in base:
                self.w = R[0] + R[1]
                self.r = R[0] + R[1]
            elif base.startswith("v_cmp"):
                self.w = R[0]
                self.r = sum(R[1:], [])
            elif base.startswith(("v_add_co", "v_sub_co", "v_addc_co", "v_subb_co")):
                self.w = R[0] + R[1]
                self.r = sum(R[2:], [])
            else:
                self.w = R[0]
                self.r = sum(R[1:], [])
                if base.startswith(("v_fmac", "v_dot2c", "v_mac", "v_pk_fmac")) or "UNUSED_PRESERVE" in mods or self.dpp:
                    self.r = self.r + R[0]
                if base.startswith("v_cndmask") and len(ops) == 3:
                    self.r = self.r + [("x", "vcc")]
        elif mn.startswith("ds_"):
            self.kind = "ds"
            if mn.startswith(("ds_read", "ds_bpermute", "ds_swizzle", "ds_permute")):
                self.w = R[0]
                self.r = sum(R[1:], [])
            else:
                self.r = sum(R, [])
        elif mn.startswith(("buffer_", "global_")):
            self.kind = "vmem"
            allmods = mods + " " + " ".join(ops)
            if mn in ("buffer_wbl2", "buffer_inv"):
                pass
            elif re.search(r"\blds\b", mods) or "load_lds" in mn:
                self.lds_dma = True
                self.r = sum(R, []) + [("x", "m0")]
            elif "load" in mn:
                self.w = R[0]
                self.r = sum(R[1:], [])
            elif "atomic" in mn:
                self.r = sum(R, [])
                if re.search(r"\bsc0\b", allmods):
                    self.w = R[0]
            else:
                self.r = sum(R, [])
                if "x4" in mn or "x3" in mn:
                    self.wide_store = True
        elif mn.startswith("s_load") or mn.startswith("s_buffer_load") or mn in ("s_memtime", "s_memrealtime"):
            self.kind = "smem"
            self.w = R[0]
            self.r = sum(R[1:], [])
        elif mn == "s_waitcnt":
            self.kind = "wait"
        elif mn.startswith("s_"):
            self.kind = "salu"
            if mn.startswith(("s_cmp", "s_cbranch", "s_branch", "s_barrier", "s_endpgm", "s_setprio", "s_sleep",
                              "s_bitcmp")):
                self.r = sum(R, [])
            elif "saveexec" in mn:
                self.w = R[0] + [("x", "exec")]
                self.r = sum(R[1:], []) + [("x", "exec")]
            else:
                self.w = R[0] if R else []
                self.r = sum(R[1:], [])
                if mn.startswith(("s_addk", "s_mulk")):
                    self.r = self.r + R[0]
        else:
            raise ValueError("unknown instruction: " + text)


MFMA_D_RAW = {2: 5, 4: 8, 8: 12, 16: 20}
MFMA_D_C_OVERLAP = {2: 4, 4: 6, 8: 10, 16: 18}
MFMA_C_WAR = {2: 1, 4: 3, 8: 7, 16: 15}


def check_stream(name, stream):
    probs = []
    n = len(stream)
    pos = [0] * (n + 1)
    for i, ins in enumerate(stream):
        pos[i + 1] = pos[i] + ins.nop
    last_w = {}
    last_mfma_c = {}
    last_store = {}
    vm_out = []
    lg_out = []

    def dist(a, b):
        return pos[b] - pos[a + 1]

    def need(a, b, k, why):
        if dist(a, b) < k:
            probs.append(f"[{name}] {why}: need {k} have {dist(a, b)}\n    P: {stream[a].text.strip()}\n    C: {stream[b].text.strip()}")

    for i, ins in enumerate(stream):
        if ins.kind == "wait":
            m = re.search(r"vmcnt\((\d+)\)", ins.text)
            if m:
                k = int(m.group(1))
                while len(vm_out) > k:
                    vm_out.pop(0)
            m = re.search(r"lgkmcnt\((\d+)\)", ins.text)
            if m:
                k = int(m.group(1))
                if k == 0:
                    lg_out = []
                else:
                    if any(x[2] for x in lg_out):
                        probs.append(f"[{name}] counted lgkmcnt with SMEM outstanding: {ins.text.strip()}")
                    while len(lg_out) > k:
                        lg_out.pop(0)
            continue
        touched = set(ins.r) | set(ins.w)
        for (j, regs) in vm_out:
            if touched & regs:
                probs.append(f"[{name}] register pending from vmem load\n    P: {stream[j].text.strip()}\n    C: {ins.text.strip()}")
                break
        for (j, regs, _) in lg_out:
            if touched & regs:
                probs.append(f"[{name}] register pending from lgkm op\n    P: {stream[j].text.strip()}\n    C: {ins.text.strip()}")
                break
        isvalu = ins.kind in ("valu", "trans")
        for reg in set(ins.r):
            j = last_w.get(reg)
            if j is None:
                continue
            p = stream[j]
            pv = p.kind in ("valu", "trans")
            if pv and reg[0] in "va":
                if ins.kind == "mfma":
                    need(j, i, 2, "VALU->MFMA operand")
                if isvalu and ins.mn.startswith("v_permlane"):
                    need(j, i, 2, "VALU->permlane")
                if isvalu and ins.dpp and reg in parse_reg(ins.ops[1]):
                    need(j, i, 2, "VALU->DPP")
                if isvalu and ins.mn.startswith(("v_readlane", "v_readfirstlane")):
                    need(j, i, 1, "VALU->readlane")
                if p.mn.startswith("v_dot") and not ins.mn.startswith(p.mn[:8]):
                    need(j, i, 3, "DLop->other")
                if p.kind == "trans" and ins.kind == "valu":
                    need(j, i, 1, "trans->VALU")
                if p.sdwa and isvalu and "dst_sel:DWORD" not in p.text:
                    need(j, i, 1, "SDWA dst_sel->VALU")
            if pv and (reg[0] == "s" or reg == ("x", "vcc")):
                if isvalu:
                    need(j, i, 2, "VALU sgpr write->VALU read")
                if ins.kind == "vmem":
                    need(j, i, 5, "VALU sgpr write->VMEM")
            if p.kind == "salu" and reg == ("x", "m0") and ins.lds_dma:
                need(j, i, 1, "m0 write->LDS DMA")
            if p.kind == "mfma":
                if ins.kind == "mfma":
                    if reg in ins.A or reg in ins.B:
                        need(j, i, MFMA_D_RAW[p.passes], "MFMA D->MFMA A/B")
                    elif reg in ins.C:
                        if not (ins.C == p.w and ins.passes == p.passes):
                            need(j, i, MFMA_D_C_OVERLAP[p.passes], "MFMA D->MFMA C overlap")
                else:
                    need(j, i, MFMA_D_RAW[p.passes], "MFMA D->read")
        for reg in set(ins.w):
            j = last_w.get(reg)
            if j is not None and stream[j].kind == "mfma" and ins.kind != "mfma":
                need(j, i, MFMA_D_RAW[stream[j].passes], "MFMA D->write (WAW)")
            j = last_mfma_c.get(reg)
            if j is not None and isvalu:
                need(j, i, MFMA_C_WAR[stream[j].passes], "MFMA C read->VALU write (WAR)")
            j = last_store.get(reg)
            if j is not None:
                need(j, i, 2 if isvalu else 1, "wide store data WAR")
        for reg in ins.w:
            last_w[reg] = i
        if ins.kind == "mfma":
            for reg in ins.C:
                last_mfma_c[reg] = i
        if ins.wide_store:
            for reg in parse_reg(ins.ops[0]):
                last_store[reg] = i
        if ins.kind == "vmem":
            vm_out.append((i, set(ins.w)))
            if len(vm_out) > 63:
                probs.append(f"[{name}] more than 63 vmem outstanding at {ins.text.strip()}")
                vm_out.pop(0)
        if ins.kind == "ds":
            lg_out.append((i, set(ins.w), False))
        if ins.kind == "smem":
            lg_out.append((i, set(ins.w), True))
    return probs


INSTRUMENT = False
DBGTL = False
STAMP_OFF = 0x8000000
_kidx = [0]


class Kernel:
    def __init__(self, name, grid, block, lds):
        self.kidx = _kidx[0]
        _kidx[0] += 1
        self.name, self.grid, self.block, self.lds = name, grid, block, lds
        self.items = []
        self.vnext = 1
        self.snext = 4
        self.vmax = 1
        self.smax = 4
        self.uses_agpr = 0
        self._lbl = 0

    def v(self, n=1, align=None):
        if align is None:
            align = 1 if n == 1 else 2
        b = (self.vnext + align - 1) // align * align
        self.vnext = b + n
        self.vmax = max(self.vmax, self.vnext)
        assert self.vnext <= 512, "out of vgprs"
        return b

    def s(self, n=1, align=None):
        if align is None:
            align = 1 if n == 1 else (2 if n == 2 else 4)
        b = (self.snext + align - 1) // align * align
        self.snext = b + n
        self.smax = max(self.smax, self.snext)
        assert self.snext <= (68 if INSTRUMENT else 100), "out of sgprs"
        return b

    def label(self, base="L"):
        self._lbl += 1
        return f"{self.name}_{base}{self._lbl}"

    def __call__(self, text):
        for line in text.split("\n"):
            t = line.strip()
            if not t:
                continue
            if t.startswith(";"):
                self.items.append(("raw", "  " + t))
            elif t.endswith(":"):
                self.items.append(("l", t))
            elif t.startswith("."):
                self.items.append(("raw", t))
            else:
                self.items.append(("i", t))

    def stamp(self, i):
        if INSTRUMENT:
            self.items.append(("i", f"s_memtime s[{68 + 2 * i}:{69 + 2 * i}]"))
            self.nstamp = max(getattr(self, "nstamp", 0), i + 1)

    def loop_begin(self):
        self.items.append(("loop_begin",))

    def loop_end(self):
        self.items.append(("loop_end",))

    def cut(self):
        self.items.append(("cut",))

    def _vr(self, text):
        return text

    def trace(self):
        traces = [[]]
        stack = []
        for it in self.items:
            if it[0] == "i":
                traces[-1].append(it[1])
            elif it[0] == "loop_begin":
                stack.append(len(traces[-1]))
            elif it[0] == "loop_end":
                b = stack.pop()
                traces[-1].extend(traces[-1][b:])
            elif it[0] == "cut":
                traces.append([])
        return traces

    def check(self):
        probs = []
        for t in self.trace():
            probs += check_stream(self.name, [Ins(x) for x in t])
        return probs

    def text(self):
        out = [f".globl {self.name}", ".p2align 8", f".type {self.name},@function", f"{self.name}:"]
        if INSTRUMENT:
            out.append("  s_memrealtime s[96:97]")
            out.append("  s_memtime s[98:99]")
            for i in range(12):
                out.append(f"  s_mov_b32 s{68 + 2 * i}, 0")
        if DBGTL:
            out.append("  s_memrealtime s[96:97]")
        for it in self.items:
            if it[0] == "i" and it[1] == "s_endpgm" and DBGTL:
                out.append(f"""  s_waitcnt vmcnt(0) lgkmcnt(0)
  s_memrealtime s[94:95]
  s_load_dwordx2 s[88:89], s[0:1], 80
  s_mov_b64 exec, 1
  s_mov_b32 s90, 256
  s_mov_b32 s91, 0x20000
  s_waitcnt lgkmcnt(0)
  s_add_u32 s88, s88, {(5 - self.kidx) * 512}
  s_addc_u32 s89, s89, 0
  s_not_b32 s96, s96
  v_mov_b32 v1, 0
  v_mov_b32 v2, s96
  v_mov_b32 v3, s94
  s_and_b32 s92, s2, 15
  s_cmp_eq_u32 s92, 0
  s_cbranch_scc0 {self.name}_dbgx{len(out)}
  buffer_atomic_umax v2, v1, s[88:91], 0 offen offset:{self.kidx * 8}
  buffer_atomic_umax v3, v1, s[88:91], 0 offen offset:{self.kidx * 8 + 4}
{self.name}_dbgx{len(out)}:
  s_endpgm""")
            elif it[0] == "i" and it[1] == "s_endpgm" and INSTRUMENT:
                out.append(f"""  s_waitcnt vmcnt(0) lgkmcnt(0)
  s_memrealtime s[94:95]
  s_memtime s[92:93]
  s_load_dwordx2 s[64:65], s[0:1], 88
  s_mov_b64 exec, -1
  s_mov_b32 s66, 0x10000000
  s_mov_b32 s67, 0x20000
  v_lshrrev_b32 v1, 6, v0
  v_lshlrev_b32 v1, 6, v1
  s_lshl_b32 s63, s2, 10
  s_add_u32 s63, s63, {STAMP_OFF + self.kidx * 0x100000}
  s_waitcnt lgkmcnt(0)
  v_mov_b32 v4, s96
  v_mov_b32 v5, s94
  v_mov_b32 v6, s98
  v_mov_b32 v7, s92
  buffer_store_dwordx4 v[4:7], v1, s[64:67], s63 offen""")
                for q in range(3):
                    out.append("  s_nop 1")
                    for e in range(4):
                        out.append(f"  v_mov_b32 v{8 + 4 * q + e}, s{68 + 2 * (4 * q + e)}")
                    out.append(f"  buffer_store_dwordx4 v[{8 + 4 * q}:{11 + 4 * q}], v1, s[64:67], s63 offen offset:{16 + 16 * q}")
                out.append("  s_endpgm")
            elif it[0] == "i":
                out.append("  " + it[1])
            elif it[0] == "l":
                out.append(it[1])
            elif it[0] == "raw":
                out.append(it[1])
        return "\n".join(out) + "\n"

    def regs_used(self):
        mv, ma, ms = 0, -1, 0
        for it in self.items:
            if it[0] != "i":
                continue
            t = it[1].split(";")[0]
            for m in re.finditer(r"\b([vas])(\d+)\b|\b([vas])\[(\d+):(\d+)\]", t):
                c = m.group(1) or m.group(3)
                hi = int(m.group(2)) if m.group(2) else int(m.group(5))
                if c == "v":
                    mv = max(mv, hi)
                elif c == "a":
                    ma = max(ma, hi)
                else:
                    ms = max(ms, hi)
        return mv + 1, ma + 1, ms + 1

    def descriptor(self):
        nv, na, ns = self.regs_used()
        if INSTRUMENT or DBGTL:
            nv, ns = max(nv, 20), 100
        acc = (nv + 3) // 4 * 4
        tot = acc + na if na else nv
        return f""".p2align 6
.amdhsa_kernel {self.name}
  .amdhsa_next_free_vgpr {tot}
  .amdhsa_next_free_sgpr {max(ns, 16)}
  .amdhsa_accum_offset {acc}
  .amdhsa_group_segment_fixed_size 0
  .amdhsa_kernarg_size 96
  .amdhsa_user_sgpr_count 2
  .amdhsa_user_sgpr_kernarg_segment_ptr 1
  .amdhsa_system_sgpr_workgroup_id_x 1
.end_amdhsa_kernel
"""

    def launch_line(self):
        return f"; @launch kernel={self.name} grid=({self.grid},1,1) block=({self.block},1,1) lds={self.lds}"


def vr(b, n):
    if b >= 256:
        b -= 256
        return f"a{b}" if n == 1 else f"a[{b}:{b + n - 1}]"
    assert b + n <= 256, (b, n)
    return f"v{b}" if n == 1 else f"v[{b}:{b + n - 1}]"


def sr(b, n):
    return f"s{b}" if n == 1 else f"s[{b}:{b + n - 1}]"


def build_file(kernels, header):
    s = header
    for k in kernels:
        s += k.launch_line() + "\n"
    s += '.amdgcn_target "amdgcn-amd-amdhsa--gfx950"\n.text\n'
    seen = []
    for k in kernels:
        if k.name in seen:
            continue
        seen.append(k.name)
        s += k.text()
    s += 'code_end:\n.section .rodata,"a"\n'
    seen = []
    for k in kernels:
        if k.name in seen:
            continue
        seen.append(k.name)
        s += k.descriptor()
    return s
```

```python
from common import *
LOG2E = 0x3fb8aa3b
NT = '' if os.environ.get('K1NONT') else ' nt'
NG, NL, NR = 120, 256, 120

def swap_add(k, a, b, which):
    k(f"v_mov_b32 v{b}, v{a}")
    k("s_nop 1")
    k(f"v_permlane{which}_swap_b32 v{a}, v{b}")
    k(f"v_add_f32 v{a}, v{a}, v{b}")

def gen_k1():
    NP = 8 if os.environ.get('K1PF', '1') == '1' else 0
    k = Kernel("k1_kernel", NG + NL + NR + NP, 320, 5632)
    Lrep, Lln, Lend, Lpf = k.label("rep"), k.label("ln"), k.label("end"), k.label("pf")
    k(f"s_cmp_ge_u32 s2, {NG + NL + NR}")
    k(f"s_cbranch_scc1 {Lpf}")
    ws = load_srd(k, L.A_WS, L.WS_USED)
    k(f"s_cmp_ge_u32 s2, {NG + NL}")
    k(f"s_cbranch_scc1 {Lrep}")
    k(f"s_cmp_ge_u32 s2, {NG}")
    k(f"s_cbranch_scc1 {Lln}")
    if os.environ.get('K1SKIP'):
        k(f"s_cmp_ge_u32 s2, 40")
        k(f"s_cbranch_scc1 {Lend}")
    s0, v0_ = k.snext, k.vnext
    wm = load_srd(k, L.A_WMOD, 640*3840*2)
    cs = load_srd(k, L.A_C, 1280)
    sw, lane = wave_id(k)
    skh, sstrip, st = k.s(), k.s(), k.s()
    k(f"s_and_b32 s{skh}, s2, 1")
    k(f"s_lshr_b32 s{sstrip}, s2, 1")
    row, vw, vc, t = k.v(), k.v(), k.v(), k.v()
    k(f"s_mul_i32 s{st}, s{skh}, 320")
    k(f"v_lshrrev_b32 v{row}, 3, v0")
    k(f"v_add_u32 v{row}, s{st}, v{row}")
    k(f"v_lshlrev_b32 v{vc}, 1, v{row}")
    k(f"v_mul_u32_u24 v{vw}, 7680, v{row}")
    k(f"v_and_b32 v{t}, 7, v0")
    k(f"v_lshl_add_u32 v{vw}, v{t}, 4, v{vw}")
    k(f"s_lshl_b32 s{st}, s{sstrip}, 7")
    k(f"v_add_u32 v{vw}, s{st}, v{vw}")
    so = [k.s() for _ in range(8)]
    for i in range(8):
        k(f"s_mov_b32 s{so[i]}, {i*40*7680}")
    W = k.v(32, 4); C = k.v(8); acc = k.v(8, 4); u = k.v(8)
    k("s_waitcnt lgkmcnt(0)")
    for i in range(8):
        k(f"buffer_load_ushort v{C+i}, v{vc}, s[{cs}:{cs+3}], 0 offen offset:{80*i}")
    for i in range(8):
        k(f"buffer_load_dwordx4 v[{W+4*i}:{W+4*i+3}], v{vw}, s[{wm}:{wm+3}], s{so[i]} offen{NT}")
    for j in range(8):
        k(f"v_mov_b32 v{acc+j}, 0")
    k("s_waitcnt vmcnt(8)")
    for i in range(8): k(f"v_lshlrev_b32 v{C+i}, 16, v{C+i}")
    for i in range(8): k(f"v_mul_f32 v{u+i}, {LOG2E ^ 0x80000000:#x}, v{C+i}")
    for i in range(8): k(f"v_exp_f32 v{u+i}, v{u+i}")
    for i in range(8): k(f"v_add_f32 v{u+i}, 1.0, v{u+i}")
    for i in range(8): k(f"v_rcp_f32 v{u+i}, v{u+i}")
    for i in range(8): k(f"v_mul_f32 v{C+i}, v{C+i}, v{u+i}")
    for i in range(0, 8, 2): k(f"v_cvt_pk_bf16_f32 v{u+i}, v{C+i}, v{C+i+1}")
    for i in range(0, 8, 2):
        k(f"v_lshlrev_b32 v{C+i}, 16, v{u+i}")
        k(f"v_and_b32 v{C+i+1}, 0xffff0000, v{u+i}")
    for i in range(8):
        k(f"s_waitcnt vmcnt({7-i})")
        for d in range(4):
            k(f"v_lshlrev_b32 v{u+2*d}, 16, v{W+4*i+d}")
            k(f"v_and_b32 v{u+2*d+1}, 0xffff0000, v{W+4*i+d}")
        for j in range(8):
            k(f"v_fmac_f32 v{acc+j}, v{C+i}, v{u+j}")
    k.stamp(0)
    k("s_nop 1")
    for j in range(8):
        k(f"v_add_f32_dpp v{acc+j}, v{acc+j}, v{acc+j} row_ror:8 row_mask:0xf bank_mask:0xf")
    k(f"v_lshrrev_b32 v{row}, 4, v0")
    k(f"v_lshlrev_b32 v{row}, 8, v{row}")
    k(f"v_lshl_add_u32 v{row}, v{t}, 5, v{row}")
    k(f"ds_write_b128 v{row}, v[{acc}:{acc+3}]")
    k(f"ds_write_b128 v{row}, v[{acc+4}:{acc+7}] offset:16")
    k("s_waitcnt lgkmcnt(0)")
    k("s_barrier")
    k(f"s_cmp_lg_u32 s{sw}, 0")
    k(f"s_cbranch_scc1 {Lend}")
    k(f"v_lshlrev_b32 v{row}, 2, v{lane}")
    for p in range(0, 20, 2):
        k(f"ds_read2st64_b32 v[{W+p}:{W+p+1}], v{row} offset0:{p} offset1:{p+1}")
    k(f"s_mul_i32 s{st}, s{skh}, {3840*4}")
    k(f"s_lshl_b32 s{sstrip}, s{sstrip}, 8")
    k(f"s_add_u32 s{st}, s{st}, s{sstrip}")
    k(f"s_add_u32 s{st}, s{st}, {L.MODP}")
    k("s_waitcnt lgkmcnt(0)")
    for p in range(10): k(f"v_add_f32 v{W+p}, v{W+p}, v{W+p+10}")
    for p in range(5): k(f"v_add_f32 v{W+p}, v{W+p}, v{W+p+5}")
    k(f"v_add_f32 v{W}, v{W}, v{W+1}")
    k(f"v_add_f32 v{W+2}, v{W+2}, v{W+3}")
    k(f"v_add_f32 v{W}, v{W}, v{W+4}")
    k(f"v_add_f32 v{W}, v{W}, v{W+2}")
    k(f"buffer_store_dword v{W}, v{row}, s[{ws}:{ws+3}], s{st} offen")
    k("s_endpgm")
    k.cut()
    k(f"{Lrep}:")
    k.vnext = v0_; k.snext = s0
    wq = load_srd(k, L.A_WQKV, 640*1920*2)
    sw, lane = wave_id(k)
    sW, sTT, sS, st = k.s(), k.s(), k.s(), k.s()
    k(f"s_sub_u32 s{sW}, s2, {NG + NL}")
    k(f"s_mul_i32 s{sW}, s{sW}, 5")
    k(f"s_add_u32 s{sW}, s{sW}, s{sw}")
    k(f"s_mul_i32 s{sS}, s{sW}, 2185")
    k(f"s_lshr_b32 s{sS}, s{sS}, 16")
    k(f"s_mul_i32 s{st}, s{sS}, 30")
    k(f"s_sub_u32 s{sTT}, s{sW}, s{st}")
    k(f"s_lshl_b32 s{sTT}, s{sTT}, 1")
    k(f"s_lshl_b32 s{sS}, s{sS}, 1")
    T, G, tt, i_, h, col, c2, vin, vout = [k.v() for _ in range(9)]
    k(f"v_lshrrev_b32 v{T}, 5, v{lane}")
    k(f"v_add_u32 v{T}, s{sTT}, v{T}")
    k(f"v_and_b32 v{i_}, 15, v{lane}")
    k(f"v_lshlrev_b32 v{i_}, 1, v{i_}")
    k(f"v_bfe_u32 v{h}, v{lane}, 4, 1")
    k(f"v_mul_u32_u24 v{G}, 205, v{T}")
    k(f"v_lshrrev_b32 v{G}, 10, v{G}")
    k(f"v_mul_u32_u24 v{tt}, 5, v{G}")
    k(f"v_sub_u32 v{tt}, v{T}, v{tt}")
    k(f"v_mul_u32_u24 v{G}, 160, v{G}")
    k(f"v_mul_u32_u24 v{col}, 40, v{tt}")
    k(f"v_add_u32 v{col}, v{col}, v{G}")
    k(f"v_lshrrev_b32 v{c2}, 4, v{i_}")
    k(f"v_lshl_add_u32 v{col}, v{c2}, 2, v{col}")
    k(f"v_add_u32 v{col}, v{col}, v{i_}")
    k(f"v_lshrrev_b32 v{c2}, 2, v{i_}")
    k(f"v_lshl_add_u32 v{c2}, v{c2}, 4, v{G}")
    k(f"v_add3_u32 v{c2}, v{c2}, v{i_}, 16")
    k(f"v_cmp_eq_u32 vcc, 4, v{tt}")
    k("s_nop 1")
    k(f"v_cndmask_b32 v{col}, v{col}, v{c2}, vcc")
    k(f"v_lshl_add_u32 v{c2}, v{T}, 5, v{i_}")
    k(f"v_cmp_le_u32 vcc, 40, v{T}")
    k("s_nop 1")
    k(f"v_cndmask_b32 v{col}, v{col}, v{c2}, vcc")
    k(f"v_mul_u32_u24 v{vin}, {8*3840}, v{h}")
    k(f"v_lshl_add_u32 v{vin}, v{col}, 1, v{vin}")
    k(f"s_mul_i32 s{st}, s{sS}, {16*3840}")
    k(f"v_add_u32 v{vin}, s{st}, v{vin}")
    k(f"v_mul_u32_u24 v{vout}, {40*1024}, v{T}")
    k(f"v_lshl_add_u32 v{c2}, v{h}, 5, v{i_}")
    k(f"v_lshl_add_u32 v{vout}, v{c2}, 4, v{vout}")
    so = [k.s() for _ in range(16)]
    for j in range(16):
        k(f"s_mov_b32 s{so[j]}, {((j//8)*16 + j%8)*3840}")
    sl, sh, so0, so1 = k.s(), k.s(), k.s(), k.s()
    k(f"s_mov_b32 s{sl}, 0x05040100")
    k(f"s_mov_b32 s{sh}, 0x07060302")
    k(f"s_lshl_b32 s{so0}, s{sS}, 10")
    k(f"s_add_u32 s{so0}, s{so0}, {L.WQKV}")
    k(f"s_add_u32 s{so1}, s{so0}, 1024")
    A = k.v(16, 4); Tm = k.v(16, 4)
    k("s_waitcnt lgkmcnt(0)")
    repack_loads(k, A, vin, wq, [f"s{x}" for x in so[:8]], NT)
    repack_loads(k, A+8, vin, wq, [f"s{x}" for x in so[8:]], NT)
    k("s_waitcnt vmcnt(8)")
    repack_store(k, A, Tm, sl, sh, vout, ws, f"s{so0}")
    k("s_waitcnt vmcnt(2)")
    repack_store(k, A+8, Tm+8, sl, sh, vout, ws, f"s{so1}")
    k("s_endpgm")
    k.cut()
    k(f"{Lln}:")
    k.vnext = v0_; k.snext = s0
    xs = load_srd(k, L.A_X, 2048*1280)
    sw, lane = wave_id(k)
    st, srow, sid = k.s(), k.s(), k.s()
    k(f"s_sub_u32 s{sid}, s2, {NG}")
    r, ch, vx, vp, vo = [k.v() for _ in range(5)]
    k(f"v_and_b32 v{r}, 7, v{lane}")
    k(f"v_lshrrev_b32 v{ch}, 3, v{lane}")
    k(f"s_lshl_b32 s{st}, s{sw}, 4")
    k(f"v_add_u32 v{ch}, s{st}, v{ch}")
    k(f"v_mul_u32_u24 v{vx}, 1280, v{r}")
    k(f"v_lshl_add_u32 v{vx}, v{ch}, 4, v{vx}")
    k(f"s_mul_i32 s{srow}, s{sid}, {8*1280}")
    X = k.v(8, 4)
    k("s_waitcnt lgkmcnt(0)")
    k(f"buffer_load_dwordx4 v[{X}:{X+3}], v{vx}, s[{xs}:{xs+3}], s{srow} offen{os.environ.get('K1XNT', NT)}")
    k(f"buffer_load_dwordx4 v[{X+4}:{X+7}], v{vx}, s[{xs}:{xs+3}], s{srow} offen offset:128{os.environ.get('K1XNT', NT)}")
    t1 = k.v()
    k(f"v_lshrrev_b32 v{vo}, 1, v{ch}")
    k(f"v_lshlrev_b32 v{vo}, 10, v{vo}")
    k(f"v_and_b32 v{t1}, 1, v{ch}")
    k(f"v_lshl_add_u32 v{vo}, v{t1}, 9, v{vo}")
    k(f"v_lshl_add_u32 v{vo}, v{r}, 4, v{vo}")
    so0, so1 = k.s(), k.s()
    k(f"s_lshr_b32 s{so0}, s{sid}, 2")
    k(f"s_mul_i32 s{so0}, s{so0}, {40*1024}")
    k(f"s_and_b32 s{st}, s{sid}, 3")
    k(f"s_lshl_b32 s{st}, s{st}, 7")
    k(f"s_add_u32 s{so0}, s{so0}, s{st}")
    k(f"s_add_u32 s{so0}, s{so0}, {L.HH}")
    k(f"s_add_u32 s{so1}, s{so0}, 4096")
    sm, tmp = k.v(2, 2), k.v()
    sq = sm + 1
    ones = k.s()
    k(f"s_mov_b32 s{ones}, 0x3f803f80")
    k(f"v_mov_b32 v{sm}, 0")
    k(f"v_mov_b32 v{sq}, 0")
    k("s_waitcnt vmcnt(0)")
    for d in range(8):
        k(f"v_dot2_f32_bf16 v{sm}, v{X+d}, s{ones}, v{sm}")
        k(f"v_dot2_f32_bf16 v{sq}, v{X+d}, v{X+d}, v{sq}")
    k("s_nop 2")
    k(f"v_add_f32_dpp v{sm}, v{sm}, v{sm} row_ror:8 row_mask:0xf bank_mask:0xf")
    k(f"v_add_f32_dpp v{sq}, v{sq}, v{sq} row_ror:8 row_mask:0xf bank_mask:0xf")
    for w in (16, 32):
        swap_add(k, sm, tmp, w)
        swap_add(k, sq, tmp, w)
    va = k.v()
    k(f"s_lshl_b32 s{st}, s{sw}, 6")
    k(f"v_lshl_add_u32 v{va}, v{r}, 3, s{st}")
    k(f"ds_write_b64 v{va}, v[{sm}:{sm+1}] offset:5120")
    k("s_waitcnt lgkmcnt(0)")
    k("s_barrier")
    ST = k.v(10, 2); U = k.v(16, 4)
    k(f"v_lshlrev_b32 v{va}, 3, v{r}")
    for w in range(5):
        k(f"ds_read_b64 v[{ST+2*w}:{ST+2*w+1}], v{va} offset:{5120+64*w}")
    for d in range(8):
        k(f"v_lshlrev_b32 v{U+2*d}, 16, v{X+d}")
        k(f"v_and_b32 v{U+2*d+1}, 0xffff0000, v{X+d}")
    k("s_waitcnt lgkmcnt(0)")
    for c in range(2):
        k(f"v_add_f32 v{ST+c}, v{ST+c}, v{ST+2+c}")
        k(f"v_add_f32 v{ST+4+c}, v{ST+4+c}, v{ST+6+c}")
    for c in range(2):
        k(f"v_add_f32 v{ST+c}, v{ST+c}, v{ST+8+c}")
    for c in range(2):
        k(f"v_add_f32 v{ST+c}, v{ST+c}, v{ST+4+c}")
    inv = 0x3acccccd
    k(f"v_mul_f32 v{ST}, {inv:#x}, v{ST}")
    k(f"v_mul_f32 v{ST+1}, {inv:#x}, v{ST+1}")
    k(f"v_fma_f32 v{ST+1}, -v{ST}, v{ST}, v{ST+1}")
    k(f"v_max_f32 v{ST+1}, 0, v{ST+1}")
    k(f"v_add_f32 v{ST+1}, 0x3727c5ac, v{ST+1}")
    k(f"v_rsq_f32 v{ST+1}, v{ST+1}")
    k("s_nop 0")
    k(f"v_mul_f32 v{ST}, v{ST}, v{ST+1}")
    for e in range(16):
        k(f"v_fma_f32 v{U+e}, v{U+e}, v{ST+1}, -v{ST}")
    for i in range(2):
        for d in range(4*i, 4*i + 4):
            k(f"v_cvt_pk_f16_f32 v{X+d}, v{U+2*d}, v{U+2*d+1}")
        k(f"buffer_store_dwordx4 v[{X+4*i}:{X+4*i+3}], v{vo}, s[{ws}:{ws+3}], s{(so0, so1)[i]} offen{SC('k1')}")
    k.stamp(3)
    k("s_endpgm")
    k.cut()
    k(f"{Lpf}:")
    k(f"s_cmp_ge_u32 s2, {NG + NL + NR + NP}")
    k(f"s_cbranch_scc1 {Lend}")
    Lpc = k.label("pc")
    k("s_getpc_b64 s[4:5]")
    k(f"{Lpc}:")
    k(f"s_add_u32 s4, s4, k2_kernel - {Lpc}")
    k(f"s_addc_u32 s5, s5, 0")
    k(f"v_lshlrev_b32 v1, 7, v0")
    for i in range(2):
        k(f"v_min_u32 v2, code_end - k2_kernel - 4, v1")
        k(f"global_load_dword v{3+i}, v2, s[4:5]")
        k(f"v_add_u32 v1, {320*128}, v1")
    k(f"{Lend}:")
    k("s_endpgm")
    return k

def modf_finalize(k, ws, sj, Lend):
    st = k.s(); n, vx, t1, sec = [k.v() for _ in range(4)]; T = k.v(4)
    Lz = k.label("z")
    k(f"s_cmp_lg_u32 s{sj}, 10")
    k(f"s_cbranch_scc1 {Lz}")
    Z = k.v(4, 4)
    for e in range(4): k(f"v_mov_b32 v{Z+e}, 0")
    k(f"v_lshlrev_b32 v{vx}, 4, v0")
    k(f"s_mov_b32 s{st}, {L.CNT}")
    k("s_waitcnt lgkmcnt(0)")
    k(f"buffer_store_dwordx4 v[{Z}:{Z+3}], v{vx}, s[{ws}:{ws+3}], s{st} offen")
    k(f"s_mov_b32 s{st}, {L.CNT + 4096}")
    k(f"buffer_store_dwordx4 v[{Z}:{Z+3}], v{vx}, s[{ws}:{ws+3}], s{st} offen")
    k(f"{Lz}:")
    k(f"s_cmp_ge_u32 s{sj}, 10")
    k(f"s_cbranch_scc1 {Lend}")
    k(f"s_lshl_b32 s{st}, s{sj}, 8")
    k(f"v_add_u32 v{n}, s{st}, v0")
    k(f"v_lshlrev_b32 v{vx}, 2, v{n}")
    k(f"s_mov_b32 s{st}, {L.MODP + 1280*4}")
    k("s_waitcnt lgkmcnt(0)")
    k(f"buffer_load_dword v{T}, v{vx}, s[{ws}:{ws+3}], s{st} offen")
    k(f"s_mov_b32 s{st}, {L.MODP + 1280*4 + 3840*4}")
    k(f"buffer_load_dword v{T+1}, v{vx}, s[{ws}:{ws+3}], s{st} offen")
    k(f"v_mul_u32_u24 v{sec}, 13108, v{n}")
    k(f"v_lshrrev_b32 v{sec}, 23, v{sec}")
    k(f"v_cmp_eq_u32 vcc, 2, v{sec}")
    k(f"v_mov_b32 v{T+2}, 1.0")
    k(f"v_mul_u32_u24 v{t1}, 640, v{sec}")
    k(f"v_cndmask_b32 v{T+2}, 0, v{T+2}, vcc")
    k(f"v_sub_u32 v{n}, v{n}, v{t1}")
    k("s_waitcnt vmcnt(0)")
    k(f"v_add_f32 v{T}, v{T}, v{T+1}")
    k(f"v_cvt_pk_bf16_f32 v{T}, v{T}, v{T}")
    k(f"v_lshlrev_b32 v{T}, 16, v{T}")
    k(f"v_add_f32 v{T}, v{T+2}, v{T}")
    k(f"v_cvt_pk_bf16_f32 v{T+1}, v{T}, v{T}")
    k(f"v_lshlrev_b32 v{T}, 16, v{T+1}")
    k(f"s_mov_b32 s{st}, {L.MODF + 1280*4}")
    k(f"buffer_store_dword v{T}, v{vx}, s[{ws}:{ws+3}], s{st} offen")
    k(f"v_lshrrev_b32 v{vx}, 4, v{n}")
    k(f"v_lshlrev_b32 v{vx}, 6, v{vx}")
    k(f"v_bfe_u32 v{t1}, v{n}, 2, 1")
    k(f"v_lshl_add_u32 v{vx}, v{t1}, 5, v{vx}")
    k(f"v_bfe_u32 v{t1}, v{n}, 3, 1")
    k(f"v_lshl_add_u32 v{vx}, v{t1}, 3, v{vx}")
    k(f"v_and_b32 v{t1}, 3, v{n}")
    k(f"v_lshl_add_u32 v{vx}, v{t1}, 1, v{vx}")
    k(f"v_and_b32 v{t1}, 1, v{sec}")
    k(f"v_lshl_add_u32 v{vx}, v{t1}, 4, v{vx}")
    k(f"v_subrev_u32 v{sec}, 1, v{sec}")
    k(f"v_cmp_gt_u32 vcc, 2, v{sec}")
    k(f"s_mov_b32 s{st}, {L.SP}")
    k(f"s_and_b64 exec, exec, vcc")
    k(f"s_cbranch_execz {Lend}")
    k(f"buffer_store_short v{T+1}, v{vx}, s[{ws}:{ws+3}], s{st} offen")
```
